```python
import torch

def _softmax(x, axis=-1):
    return torch.softmax(x, dim=axis)
def _gelu(x):
    return torch.nn.functional.gelu(x, approximate="tanh")
def _silu(x):
    return torch.nn.functional.silu(x)
def _sigmoid(x):
    return torch.sigmoid(x)
def _layernorm(x, axis=-1, eps=1e-5):
    m = x.mean(dim=axis, keepdim=True)
    v = x.var(dim=axis, keepdim=True, unbiased=False)
    return (x - m) / torch.sqrt(v + eps)
def _scatter_add(tgt, idx, src, axis=0):
    return tgt.clone().index_add_(axis, idx, src)
def _segment_sum(src, seg, n):
    out = torch.zeros((n,) + src.shape[1:], dtype=src.dtype)
    return out.index_add_(0, seg, src)
def _pad(x, pw):
    flat = tuple(v for pair in reversed(pw) for v in pair)
    return torch.nn.functional.pad(x, flat)

kernel_name = 'standalone__mha_softmax__near_ridge'

def setup_inputs():

    _w = (lambda a: (lambda t: t.to(torch.bfloat16) if t.is_floating_point() else t)(torch.as_tensor(a)))
    B, H, Sq, Sk, D = 8, 32, 192, 1024, 128
    return {
        "q": _w((lambda *s: torch.randn(*s, dtype=torch.bfloat16) * 0.8)(B, H, Sq, D)),
        "k": _w((lambda *s: torch.randn(*s, dtype=torch.bfloat16) * 0.8)(B, H, Sk, D)),
        "v": _w((lambda *s: torch.randn(*s, dtype=torch.bfloat16) * 0.05)(B, H, Sk, D)),
    }

def reference(q, k, v):
    scale = q.shape[-1] ** -0.5
    scores = torch.einsum("bhqd,bhkd->bhqk", q, k) * scale
    p = _softmax(scores, axis=-1)
    return torch.einsum("bhqk,bhkd->bhqd", p, v)
```

```python
import re

def regs(tok):
    tok = tok.strip()
    tok = tok.replace("-", "") if tok.startswith("-") else tok
    m = re.fullmatch(r"abs\((.*)\)|\|(.*)\|", tok)
    if m: tok = m.group(1) or m.group(2)
    m = re.fullmatch(r"([vas])\[(\d+):(\d+)\]", tok)
    if m: return {f"{m.group(1)}{i}" for i in range(int(m.group(2)), int(m.group(3)) + 1)}
    m = re.fullmatch(r"([vas])(\d+)", tok)
    if m: return {tok}
    if tok in ("vcc", "m0", "exec"): return {tok}
    return set()

TRANS = ("v_exp_f32", "v_log_f32", "v_rcp_f32", "v_rsq_f32", "v_sqrt_f32")

class Ins:
    def __init__(self, text):
        self.text = text
        t = text.split(";")[0].strip()
        self.label = t.endswith(":")
        self.directive = t.startswith(".") and not self.label
        self.op = t.split()[0] if t and not self.label else ""
        rest = t[len(self.op):].strip() if self.op else ""
        ops = [o.strip() for o in rest.split(",")] if rest else []
        if ops:
            last = ops[-1].split()
            self.mods = last[1:]
            ops[-1] = last[0]
        else:
            self.mods = []
        self.ops = ops
        op = self.op
        self.mfma = op.startswith("v_mfma")
        self.valu = op.startswith("v_") and not self.mfma
        self.trans = any(op.startswith(x) for x in TRANS)
        self.ds = op.startswith("ds_")
        self.vmem = op.startswith("buffer_") or op.startswith("global_")
        self.salu = op.startswith("s_")
        self.dma = self.vmem and "lds" in self.mods
        self.w, self.r = set(), set()
        self.srcc = set()
        if self.label or self.directive or not op:
            return
        if self.mfma:
            self.w = regs(ops[0]); self.srcc = regs(ops[3]); self.ab = regs(ops[1]) | regs(ops[2]); self.r = self.ab | self.srcc
        elif op.startswith("v_permlane"):
            self.w = regs(ops[0]) | regs(ops[1]); self.r = set(self.w)
        elif op.startswith("v_cmp"):
            self.w = regs(ops[0]); self.r = set().union(*[regs(o) for o in ops[1:]])
        elif self.valu:
            self.w = regs(ops[0]); self.r = set().union(*[regs(o) for o in ops[1:]]) if len(ops) > 1 else set()
            if op.startswith("v_fmac"): self.r |= self.w
        elif op.startswith("ds_read"):
            self.w = regs(ops[0]); self.r = regs(ops[1])
        elif op.startswith("ds_write"):
            self.r = set().union(*[regs(o) for o in ops])
        elif self.dma:
            self.r = set().union(*[regs(o) for o in ops]) | {"m0"}
        elif op.startswith("buffer_load"):
            self.w = regs(ops[0]); self.r = set().union(*[regs(o) for o in ops[1:]])
        elif op.startswith("buffer_store"):
            self.r = set().union(*[regs(o) for o in ops]); self.data = regs(ops[0])
        elif self.salu:
            if op.startswith(("s_cmp", "s_waitcnt", "s_nop", "s_barrier", "s_branch", "s_cbranch", "s_endpgm", "s_setprio")):
                self.r = set().union(*[regs(o) for o in ops]) if ops else set()
            else:
                self.w = regs(ops[0]); self.r = set().union(*[regs(o) for o in ops[1:]]) if len(ops) > 1 else set()
    def states(self):
        if self.label or self.directive or not self.op: return 0
        if self.op == "s_nop": return int(self.ops[0], 0) + 1
        return 1

def passes(i):
    return 8 if "32x32" in i.op else 4

def check_hazards(lines, name=""):
    ins = [Ins(l) for l in lines]
    ins = [i for i in ins if i.states() > 0]
    errs = []
    for n, c in enumerate(ins):
        dist = 0
        for p in reversed(ins[max(0, n - 24):n]):
            need = 0
            v = lambda s: {x for x in s if x[0] in "va" and x not in ("vcc",)}
            if p.valu and c.mfma and (v(p.w) & c.r): need = max(need, 2)
            if p.mfma:
                d = 8 if passes(p) == 4 else 12
                if c.mfma:
                    if p.w & c.ab: need = max(need, d)
                    if (p.w & c.srcc) and p.w != c.srcc: need = max(need, d - 2)
                    if (p.w & c.w) and not (p.w & c.srcc): need = max(need, d)
                elif (c.valu or c.ds or c.vmem) and (p.w & (c.r | c.w)): need = max(need, d)
                if c.valu and (p.srcc & c.w): need = max(need, 3 if passes(p) == 4 else 7)
            if p.trans and c.valu and not c.trans and (p.w & c.r): need = max(need, 1)
            if p.valu and c.op.startswith("v_permlane") and (v(p.w) & c.r): need = max(need, 2)
            if p.valu and c.op.startswith(("v_readfirstlane", "v_readlane")) and (v(p.w) & c.r): need = max(need, 1)
            if p.valu and "dpp" in c.op and (v(p.w) & c.r): need = max(need, 2)
            if p.salu and "m0" in p.w and c.dma: need = max(need, 1)
            sw = {x for x in p.w if x[0] == "s" or x == "vcc"}
            if p.valu and c.vmem and (sw & c.r): need = max(need, 5)
            if p.valu and c.valu and (sw & c.r): need = max(need, 2)
            if p.op.startswith("buffer_store_dwordx4") and (p.data & c.w): need = max(need, 2 if c.valu else 1)
            if need > dist:
                errs.append(f"{name}: need {need} have {dist}: [{p.text}] -> [{c.text}]")
            dist += p.states()
    return errs
```

```python
import math, struct, sys
from asmlib import Ins, check_hazards

NAME = "standalone__mha_softmax__near_ridge_kernel"
BS = 1056
TILE = 8 * BS
R = 4
KRING = 0
VRING = R * TILE
PRIV = 2 * R * TILE
PRIVSZ = 2 * TILE
LDS_BYTES = PRIV + 4 * PRIVSZ
ESTR = 272
NSTEP = 32

def f2u(x): return struct.unpack("<I", struct.pack("<f", x))[0]
C_SCALE = f2u(math.log2(math.e) / math.sqrt(128.0))
L_MAX = f2u(2.0 ** 24)

vDMA, vKRD, vVRD, vQDMA, vQRD, vPVRD, vEW, vER, vOST = 1, 2, 3, 4, 5, 6, 7, 8, 9
vT = 10
def vO(j, b): return 28 + (j * 8 + b) * 4
def vS(par, kb, j): return 124 + par * 24 + (kb * 3 + j) * 4
def vP(par, j): return 172 + par * 12 + j * 4
def vNM(j): return 196 + j * 4
def vQ(j, s): return 208 + (j * 4 + s) * 4
NF = 8
def aF(i): return (i % NF) * 4
aONE = 32
def aL(j): return 36 + j * 4
def V4(r): return f"v[{r}:{r+3}]"
def V2(r): return f"v[{r}:{r+1}]"
def A4(r): return f"a[{r}:{r+3}]"
def A2(r): return f"a[{r}:{r+1}]"
sW, sWL, sPRIV, sK, sV, sCNT, sTHR = 3, 28, 29, 30, 31, 32, 36
SRD_Q, SRD_K, SRD_V, SRD_O, SRD_WS = "s[12:15]", "s[16:19]", "s[20:23]", "s[24:27]", "s[40:43]"
MF = "v_mfma_f32_16x16x32_bf16"

class Cfg:
    lead = 4
    pf = 4
    ldflags = "nt"
    qflags = None
    stflags = ""
    dma_groups = (0, 2, 4, 6)
    pro_depth = 0
    stamps = False
    force_slow = False
    def __init__(self, **kw):
        for k, v in kw.items():
            assert hasattr(Cfg, k), k
            setattr(self, k, v)
        if self.qflags is None: self.qflags = self.ldflags

def piece(p):
    if p < 2: return ("K", 0, p)
    g, q = divmod(p - 2, 4)
    return ("K", g + 1, q) if q < 2 else ("V", g, q - 2)

def dma_ins(cfg, p):
    kind, t, h = piece(p)
    ring = KRING if kind == "K" else VRING
    m0 = f"s_add_u32 m0, s{sWL}, {ring + (t % R) * TILE + h * (BS - 1024)}"
    so = sK if kind == "K" else sV
    inc = f"s_add_u32 s{so}, s{so}, 8192" if h == 0 else None
    off = " offset:1024" if h else ""
    ld = f"buffer_load_dwordx4 v{vDMA}, {SRD_K if kind == 'K' else SRD_V}, s{so} offen{off} {cfg.ldflags} lds".replace("  ", " ")
    return m0, inc, ld

def k_read(dst, base, tslot, f):
    kb, s = divmod(f, 4)
    return [f"ds_read_b128 {A4(dst)}, v{base} offset:{tslot + kb * 4 * BS + s * 256}"]

def v_read(dst, base, tslot, b):
    o = tslot + (b >> 1) * 256 + (b & 1) * 32
    return [f"ds_read_b64_tr_b16 {A2(dst)}, v{base} offset:{o}",
            f"ds_read_b64_tr_b16 {A2(dst + 2)}, v{base} offset:{o + 4 * BS}"]

def sm_ops(par):
    exps, cvts = [], []
    for j in range(3):
        for kb in range(2):
            s = vS(par, kb, j)
            for h in range(2):
                exps += [f"v_exp_f32 v{s+2*h}, v{s+2*h}", f"v_exp_f32 v{s+2*h+1}, v{s+2*h+1}"]
                cvts.append(f"v_cvt_pk_bf16_f32 v{vP(par, j)+2*kb+h}, v{s+2*h}, v{s+2*h+1}")
    return exps, cvts

class Slot:
    def __init__(self, mfma, need=None):
        self.mfma, self.need = mfma, need
        self.scalar, self.ds, self.dma, self.valu = [], [], [], []
    def cap(self):
        return 8 - 4 * len(self.ds) - 8 * len(self.dma) - 4 * max(0, len(self.scalar) - 1) - sum(8 if "v_exp" in v else 4 for v in self.valu)

def body_slots(cfg, u):
    pf, par = cfg.pf, u & 1
    slots, gstart = [], []
    for i in range(16):
        gstart.append(len(slots))
        fr = A4(aF(i))
        for j in range(3):
            if i < pf:
                b = 8 - pf + i
                m = f"{MF} {V4(vO(j,b))}, {fr}, {V4(vP(par^1,j))}, {V4(vO(j,b))}"
            elif i < pf + 8:
                kb, s = divmod(i - pf, 4)
                d = vS(par ^ 1, kb, j)
                m = f"{MF} {V4(d)}, {fr}, {V4(vQ(j,s))}, {V4(vNM(j) if s == 0 else d)}"
            else:
                b = i - pf - 8
                m = f"{MF} {V4(vO(j,b))}, {fr}, {V4(vP(par,j))}, {V4(vO(j,b))}"
            slots.append(Slot(m, i if j == 0 else None))
        if i == pf + 8:
            for j in range(3):
                slots.append(Slot(f"{MF} {A4(aL(j))}, {A4(aONE)}, {V4(vP(par,j))}, {A4(aL(j))}"))
    for i in range(16):
        dst = aF(i + pf)
        if i < 8: rd = k_read(dst, vKRD, ((u + 1) % R) * TILE, i)
        else: rd = v_read(dst, vVRD, (u % R) * TILE, i - 8)
        slots[gstart[i]].ds = rd
    for n, g in enumerate(cfg.dma_groups):
        m0, inc, ld = dma_ins(cfg, 2 + 4 * (u + 1) + cfg.lead + n)
        slots[gstart[g]].scalar.append(m0)
        if inc: slots[gstart[g] + 1].scalar.append(inc)
        slots[gstart[g] + 1].dma.append(ld)
    return slots, gstart

def nreads(i):
    return 1 if (i % 16) < 8 else 2

def fill_sm(cfg, slots, gstart, u):
    pf, par = cfg.pf, u & 1
    head0 = gstart[pf + 8]
    order = [(s, par ^ 1) for s in range(head0, len(slots))] + [(s, par) for s in range(0, head0)]
    ops = {p: sm_ops(p) for p in (0, 1)}
    ne = nc = 0
    head_ops = []
    for s, p in order:
        sl = slots[s]
        exps, cvts = ops[p]
        ne0 = ne
        if sl.cap() >= 8 and ne < 24:
            sl.valu.append(exps[ne]); ne += 1
            if s >= head0: head_ops.append(("e", ne - 1))
        else:
            while sl.cap() >= 4 and nc < 12 and 2 * nc + 2 <= ne0:
                sl.valu.append(cvts[nc]); nc += 1
                if s >= head0: head_ops.append(("c", nc - 1))
    assert ne == 24 and nc == 12, (ne, nc)
    return head_ops

def emit_body(cfg, u, A, last_in_loop=False):
    slots, gstart = body_slots(cfg, u)
    pf = cfg.pf
    for i in range(1, 16):
        n = sum(nreads(g) for g in range(i - pf + 1, i))
        slots[gstart[i] - 1].scalar.insert(0, f"s_waitcnt lgkmcnt({n})")
    if last_in_loop:
        slots[-2].scalar.append(f"s_cmp_lt_u32 s{sCNT}, {NSTEP // R}")
        slots[gstart[13] + 1].scalar.append(f"s_add_u32 s{sCNT}, s{sCNT}, 1")
    head_ops = fill_sm(cfg, slots, gstart, u)
    n0 = sum(nreads(g) for g in range(-pf + 1, 0))
    A(f"s_waitcnt vmcnt({cfg.lead}) lgkmcnt({n0})")
    A("s_barrier")
    for sl in slots:
        A(sl.mfma)
        for x in sl.scalar + sl.ds + sl.dma + sl.valu: A(x)
    return head_ops

def rowmax(A, par, dst):
    for j in range(3):
        s0, s1 = vS(par, 0, j), vS(par, 1, j)
        A(f"v_max3_f32 v{dst+j}, v{s0}, v{s0+1}, v{s0+2}")
        A(f"v_max3_f32 v{dst+j}, v{dst+j}, v{s0+3}, v{s1}")
        A(f"v_max3_f32 v{dst+j}, v{dst+j}, v{s1+1}, v{s1+2}")
        A(f"v_max_f32 v{dst+j}, v{dst+j}, v{s1+3}")
    for op in ("v_permlane16_swap_b32", "v_permlane32_swap_b32"):
        for j in range(3): A(f"v_mov_b32 v{dst+3+j}, v{dst+j}")
        A("s_nop 1")
        for j in range(3): A(f"{op} v{dst+j}, v{dst+3+j}")
        for j in range(3): A(f"v_max_f32 v{dst+j}, v{dst+j}, v{dst+3+j}")

def stamp(cfg, A, n):
    if cfg.stamps:
        A(f"s_memrealtime s[{50+2*n}:{51+2*n}]")

def gen(cfg):
    L = []
    A = L.append
    pf = cfg.pf
    A(f"; @launch grid=(256,1,1) block=(256,1,1) lds={LDS_BYTES}")
    A('.amdgcn_target "amdgcn-amd-amdhsa--gfx950"')
    A(".text")
    A(f".globl {NAME}")
    A(".p2align 8")
    A(f".type {NAME},@function")
    A(f"{NAME}:")
    code0 = len(L)
    stamp(cfg, A, 0)
    A("s_cmp_ge_u32 s2, 256")
    A("s_cbranch_scc1 L_end")
    A("s_load_dwordx8 s[4:11], s[0:1], 0")
    if cfg.stamps: A("s_load_dwordx2 s[40:41], s[0:1], 40")
    t = vT
    A(f"v_lshrrev_b32 v{t}, 6, v0")
    A(f"v_and_b32 v{t+1}, 63, v0")
    A(f"v_readfirstlane_b32 s{sW}, v{t}")
    A(f"v_and_b32 v{t+2}, 3, v0")
    A(f"v_bfe_u32 v{t+3}, v0, 2, 2")
    A(f"v_lshrrev_b32 v{t+4}, 4, v{t+1}")
    A(f"v_lshlrev_b32 v{vQDMA}, 4, v{t+2}")
    A(f"v_lshl_add_u32 v{vQDMA}, v{t+3}, 8, v{vQDMA}")
    A(f"v_lshl_add_u32 v{vQDMA}, v{t+4}, 6, v{vQDMA}")
    A(f"v_lshl_add_u32 v{vDMA}, v{t}, 11, v{vQDMA}")
    A("s_mul_i32 s38, s2, 49152")
    A("s_lshl_b32 s39, s2, 18")
    A(f"s_mul_i32 s{sWL}, s{sW}, {2 * BS}")
    A(f"s_mul_i32 s{sPRIV}, s{sW}, {PRIVSZ}")
    A(f"s_mul_i32 s37, s{sW}, 12288")
    A(f"s_add_u32 s{sPRIV}, s{sPRIV}, {PRIV}")
    A("s_mov_b32 s14, 49152"); A("s_mov_b32 s15, 0x20000")
    A("s_mov_b32 s18, 262144"); A("s_mov_b32 s19, 0x20000")
    A("s_mov_b32 s22, 262144"); A("s_mov_b32 s23, 0x20000")
    A("s_mov_b32 s26, 49152"); A("s_mov_b32 s27, 0x20000")
    A(f"s_mov_b32 s{sK}, -8192"); A(f"s_mov_b32 s{sV}, -8192")
    A(f"s_mov_b32 m0, s{sPRIV}")
    A("s_waitcnt lgkmcnt(0)")
    A("s_add_u32 s12, s4, s38"); A("s_addc_u32 s13, s5, 0")
    nissued = 0
    def pace():
        if cfg.pro_depth and nissued > cfg.pro_depth: A(f"s_waitcnt vmcnt({cfg.pro_depth})")
    extra = ["s_add_u32 s16, s6, s39", "s_addc_u32 s17, s7, 0", "s_add_u32 s20, s8, s39", "s_addc_u32 s21, s9, 0",
             "s_add_u32 s24, s10, s38", "s_addc_u32 s25, s11, 0"]
    for i in range(12):
        hi, lo = divmod(i, 4)
        if i:
            A(f"s_add_u32 m0, s{sPRIV}, {i * BS - lo * 1024}")
            if lo == 0: A("s_add_u32 s37, s37, 4096")
            elif extra: A(extra.pop(0)); A(extra.pop(0))
            else: A("s_nop 0")
        off = f" offset:{lo * 1024}" if lo else ""
        A(f"buffer_load_dwordx4 v{vQDMA}, {SRD_Q}, s37 offen{off} {cfg.qflags} lds".replace("  ", " "))
        nissued += 1; pace()
    npro = 2 + 4 + cfg.lead
    for p in range(npro):
        m0, inc, ld = dma_ins(cfg, p)
        A(m0); A(inc if inc else "s_nop 0"); A(ld)
        nissued += 1; pace()
    A(f"v_mul_u32_u24 v{vKRD}, {BS}, v{t+3}")
    A(f"v_lshl_add_u32 v{vKRD}, v{t+2}, 6, v{vKRD}")
    A(f"v_lshl_add_u32 v{vKRD}, v{t+4}, 4, v{vKRD}")
    A(f"v_add_u32 v{vQRD}, s{sPRIV}, v{vKRD}")
    if KRING: A(f"v_add_u32 v{vKRD}, {KRING}, v{vKRD}")
    A(f"v_mul_u32_u24 v{vVRD}, {BS}, v{t+4}")
    A(f"v_lshl_add_u32 v{vVRD}, v{t+3}, 6, v{vVRD}")
    A(f"v_lshl_add_u32 v{vVRD}, v{t+2}, 3, v{vVRD}")
    A(f"v_add_u32 v{vPVRD}, s{sPRIV}, v{vVRD}")
    A(f"v_add_u32 v{vVRD}, {VRING}, v{vVRD}")
    A(f"v_and_b32 v{t+5}, 15, v0")
    A(f"v_mul_u32_u24 v{vEW}, {ESTR}, v{t+5}")
    A(f"v_lshl_add_u32 v{vEW}, v{t+4}, 3, v{vEW}")
    A(f"v_add_u32 v{vEW}, s{sPRIV}, v{vEW}")
    A(f"v_mul_u32_u24 v{vER}, {ESTR}, v{t+4}")
    A(f"v_lshl_add_u32 v{vER}, v{t+5}, 4, v{vER}")
    A(f"v_add_u32 v{vER}, s{sPRIV}, v{vER}")
    A(f"v_mul_u32_u24 v{vOST}, 12288, v{t}")
    A(f"v_lshl_add_u32 v{vOST}, v{t+1}, 4, v{vOST}")
    A(f"s_mov_b32 s34, {C_SCALE:#x}"); A(f"s_mov_b32 s35, {C_SCALE:#x}")
    A(f"s_mov_b32 s{sTHR}, {L_MAX:#x}")
    A(f"s_mov_b32 s{sCNT}, 0")
    A("s_mov_b32 s33, 0x3f803f80")
    for r in range(0, 96, 2): A(f"v_mov_b64 {V2(vO(0,0)+r)}, 0")
    for r in range(0, 12, 2): A(f"v_mov_b64 {V2(vP(1,0)+r)}, 0")
    for r in range(4): A(f"v_accvgpr_write_b32 a{aONE+r}, s33")
    for r in range(12): A(f"v_accvgpr_write_b32 a{aL(0)+r}, 0")
    for j in range(3):
        A(f"s_waitcnt vmcnt({npro + 8 - 4 * j})")
        for s in range(4):
            A(f"ds_read_b128 {V4(vQ(j,s))}, v{vQRD} offset:{j * 4 * BS + s * 256}")
        for s in range(4):
            A(f"s_waitcnt lgkmcnt({3 - s})")
            q = vQ(j, s)
            for r in range(4):
                A(f"v_lshlrev_b32 v{t+2*r}, 16, v{q+r}")
                A(f"v_and_b32 v{t+2*r+1}, 0xffff0000, v{q+r}")
            for r in range(4): A(f"v_pk_mul_f32 {V2(t+2*r)}, {V2(t+2*r)}, s[34:35]")
            for r in range(4): A(f"v_cvt_pk_bf16_f32 v{q+r}, v{t+2*r}, v{t+2*r+1}")
    stamp(cfg, A, 1)
    A(f"s_waitcnt vmcnt({npro - 2})")
    A("s_barrier")
    for f in range(8):
        for x in k_read(aF(f), vKRD, 0, f): A(x)
    for f in range(8):
        kb, s = divmod(f, 4)
        A(f"s_waitcnt lgkmcnt({7 - f})")
        for j in range(3):
            d = vS(0, kb, j)
            A(f"{MF} {V4(d)}, {A4(aF(f))}, {V4(vQ(j,s))}, {'0' if s == 0 else V4(d)}")
    for r in range(4 * pf): A(f"v_accvgpr_write_b32 a{aF(0)+r}, 0")
    rowmax(A, 0, t)
    for j in range(3):
        for r in range(4): A(f"v_sub_f32 v{vNM(j)+r}, 0, v{t+j}")
    for kb in range(2):
        for j in range(3):
            for r in range(4): A(f"v_sub_f32 v{vS(0,kb,j)+r}, v{vS(0,kb,j)+r}, v{t+j}")
    loop = []
    head_ops = None
    for u in range(R):
        head_ops = emit_body(cfg, u, loop.append, last_in_loop=(u == R - 1))
    exps, cvts = sm_ops(0)
    for k, n in sorted(head_ops, key=lambda x: x[0] != "e"):
        if k == "c": A("s_nop 0")
        A(exps[n] if k == "e" else cvts[n])
    stamp(cfg, A, 2)
    pro = L[code0:]
    A(".p2align 6")
    A("L_loop:")
    L.extend(loop)
    A("s_cbranch_scc1 L_loop")
    tail0 = len(L)
    stamp(cfg, A, 3)
    for i in range(pf):
        A(f"s_waitcnt lgkmcnt({2 * (pf - 1 - i)})")
        b = 8 - pf + i
        for j in range(3):
            A(f"{MF} {V4(vO(j,b))}, {A4(aF(i))}, {V4(vP(1,j))}, {V4(vO(j,b))}")
    for j in range(3): A(f"v_accvgpr_read_b32 v{t+j}, a{aL(j)}")
    A(f"v_add_f32 v{t+4}, v{t}, v{t+1}")
    A(f"v_add_f32 v{t+4}, v{t+4}, v{t+2}")
    A(f"v_cmp_ngt_f32 vcc, s{sTHR}, v{t+4}")
    A("s_nop 4")
    A("s_branch L_slow" if cfg.force_slow else "s_cbranch_vccnz L_slow")
    A("L_epi:")
    epi0 = len(L)
    for j in range(3): A(f"v_rcp_f32 v{t+2*j+4}, v{t+j}")
    A("s_nop 0")
    for j in range(3):
        rl = t + 2 * j + 4
        for b in range(8):
            o = vO(j, b)
            A(f"v_pk_mul_f32 {V2(o)}, {V2(o)}, {V2(rl)} op_sel_hi:[1,0]")
            A(f"v_pk_mul_f32 {V2(o+2)}, {V2(o+2)}, {V2(rl)} op_sel_hi:[1,0]")
            A(f"v_cvt_pk_bf16_f32 v{o}, v{o}, v{o+1}")
            A(f"v_cvt_pk_bf16_f32 v{o+1}, v{o+2}, v{o+3}")
            A(f"ds_write_b64 v{vEW}, {V2(o)} offset:{j * 16 * ESTR + b * 32}")
        A("s_waitcnt lgkmcnt(0)")
        for i in range(4):
            A(f"ds_read_b128 {V4(vS(0,0,0) + (j*4+i)*4)}, v{vER} offset:{(j * 16 + i * 4) * ESTR}")
        A(f"s_mov_b32 s37, {j * 4096}")
        for i in range(4):
            A(f"s_waitcnt lgkmcnt({3 - i})")
            off = f" offset:{i * 1024}" if i else ""
            A(f"buffer_store_dwordx4 {V4(vS(0,0,0) + (j*4+i)*4)}, v{vOST}, {SRD_O}, s37 offen{off} {cfg.stflags}".rstrip())
    if cfg.stamps:
        stamp(cfg, A, 4)
        A("s_waitcnt vmcnt(0)")
        stamp(cfg, A, 5)
        A("s_mov_b32 s42, 0x100000"); A("s_mov_b32 s43, 0x20000")
        A("s_getreg_b32 s62, hwreg(HW_REG_XCC_ID)")
        A("s_waitcnt lgkmcnt(0)")
        for n in range(6): A(f"v_mov_b32 v{12+n}, s{50+2*n}")
        A("v_mov_b32 v18, s62"); A("v_mov_b32 v19, 0")
        A(f"s_lshl_b32 s37, s2, 2"); A(f"s_add_u32 s37, s37, s{sW}"); A("s_lshl_b32 s37, s37, 5")
        A("v_mov_b32 v10, s37")
        A(f"buffer_store_dwordx4 v[12:15], v10, {SRD_WS}, 0 offen")
        A(f"buffer_store_dwordx4 v[16:19], v10, {SRD_WS}, 0 offen offset:16")
    A("L_end:")
    A("s_endpgm")
    tail = L[tail0:]
    epi = L[epi0:]
    slow0 = len(L)
    A("L_slow:")
    A("s_waitcnt vmcnt(0)")
    A("s_nop 7")
    vM, vAL = vNM(0), vNM(0) + 4
    for r in range(0, 96, 2): A(f"v_mov_b64 {V2(vO(0,0)+r)}, 0")
    for r in range(12): A(f"v_accvgpr_write_b32 a{aL(0)+r}, 0")
    for j in range(3): A(f"v_mov_b32 v{vM+j}, 0xff7fffff")
    A(f"s_mov_b32 s{sK}, 0")
    slowl0 = len(L)
    A("L_slow_loop:")
    for srd, base in ((SRD_K, 0), (SRD_V, TILE)):
        for a in range(8):
            hi, lo = divmod(a, 4)
            A(f"s_add_u32 m0, s{sPRIV}, {base + a * BS - lo * 1024}")
            A(f"s_add_u32 s37, s{sK}, {hi * 4096}")
            off = f" offset:{lo * 1024}" if lo else ""
            A(f"buffer_load_dwordx4 v{vQDMA}, {srd}, s37 offen{off} lds")
    A("s_waitcnt vmcnt(0)")
    for f in range(8):
        for x in k_read(aF(f), vQRD, 0, f): A(x)
    A("s_waitcnt lgkmcnt(0)")
    for f in range(8):
        kb, s = divmod(f, 4)
        for j in range(3):
            d = vS(0, kb, j)
            A(f"{MF} {V4(d)}, {A4(aF(f))}, {V4(vQ(j,s))}, {'0' if s == 0 else V4(d)}")
    A("s_nop 7")
    for b in range(8):
        for x in v_read(aF(b), vPVRD, TILE, b): A(x)
    rowmax(A, 0, t)
    for j in range(3): A(f"v_max_f32 v{t+j}, v{t+j}, v{vM+j}")
    for j in range(3): A(f"v_sub_f32 v{vAL+j}, v{vM+j}, v{t+j}")
    for j in range(3): A(f"v_exp_f32 v{vAL+j}, v{vAL+j}")
    for j in range(3): A(f"v_mov_b32 v{vM+j}, v{t+j}")
    for j in range(3):
        for r in range(32): A(f"v_mul_f32 v{vO(j,0)+r}, v{vO(j,0)+r}, v{vAL+j}")
        for r in range(4):
            A(f"v_accvgpr_read_b32 v{t+6}, a{aL(j)+r}")
            A(f"v_mul_f32 v{t+6}, v{t+6}, v{vAL+j}")
            A(f"v_accvgpr_write_b32 a{aL(j)+r}, v{t+6}")
    for kb in range(2):
        for j in range(3):
            for r in range(4): A(f"v_sub_f32 v{vS(0,kb,j)+r}, v{vS(0,kb,j)+r}, v{vM+j}")
    exps, cvts = sm_ops(0)
    for x in exps: A(x)
    A("s_nop 0")
    for x in cvts: A(x)
    A("s_waitcnt lgkmcnt(0)")
    A("s_nop 1")
    for j in range(3): A(f"{MF} {A4(aL(j))}, {A4(aONE)}, {V4(vP(0,j))}, {A4(aL(j))}")
    for b in range(8):
        for j in range(3):
            A(f"{MF} {V4(vO(j,b))}, {A4(aF(b))}, {V4(vP(0,j))}, {V4(vO(j,b))}")
    A(f"s_add_u32 s{sK}, s{sK}, 8192")
    A(f"s_cmp_lt_u32 s{sK}, 262144")
    A("s_cbranch_scc1 L_slow_loop")
    slowl1 = len(L)
    A("s_nop 7")
    for j in range(3): A(f"v_accvgpr_read_b32 v{t+j}, a{aL(j)}")
    A("s_branch L_epi")
    errs = check_hazards(pro + loop + loop + tail, "fast")
    errs += check_hazards(L[tail0:epi0] + L[slow0:slowl1] + L[slowl0:] + epi, "slow")
    if errs:
        raise RuntimeError("\n".join(errs))
    A('.section .rodata,"a"')
    A(".p2align 6")
    A(f".amdhsa_kernel {NAME}")
    A("  .amdhsa_next_free_vgpr 304")
    A("  .amdhsa_next_free_sgpr 102")
    A("  .amdhsa_accum_offset 256")
    A("  .amdhsa_group_segment_fixed_size 0")
    A("  .amdhsa_kernarg_size 48")
    A("  .amdhsa_user_sgpr_count 2")
    A("  .amdhsa_user_sgpr_kernarg_segment_ptr 1")
    A("  .amdhsa_system_sgpr_workgroup_id_x 1")
    A("  .amdhsa_float_denorm_mode_32 3")
    A(".end_amdhsa_kernel")
    out = []
    for l in L:
        out.append(l if (l.endswith(":") or l.startswith((".", ";", " "))) else "    " + l)
    return "\n".join(out) + "\n"

if __name__ == "__main__":
    kw = {}
    for a in sys.argv[1:]:
        k, v = a.split("=", 1)
        try: v = eval(v)
        except Exception: pass
        kw[k] = v
    sys.stdout.write(gen(Cfg(**kw)))
```

```python
import math, struct, sys
from asmlib import Ins, check_hazards

NAME = "standalone__mha_softmax__near_ridge_kernel"
BS = 1056
TILE = 8 * BS
R = 4
KRING = 0
VRING = R * TILE
PRIV = 2 * R * TILE
PRIVSZ = 2 * TILE
LDS_BYTES = PRIV + 4 * PRIVSZ
ESTR = 272
NSTEP = 32

def f2u(x): return struct.unpack("<I", struct.pack("<f", x))[0]
C_SCALE = f2u(math.log2(math.e) / math.sqrt(128.0))
L_MAX = f2u(2.0 ** 24)

vDMA, vKRD, vVRD, vQDMA, vQRD, vPVRD, vEW, vER, vOST = 1, 2, 3, 4, 5, 6, 7, 8, 9
vT = 10
def vO(j, b): return 28 + (j * 8 + b) * 4
def vS(par, kb, j): return 124 + par * 24 + (kb * 3 + j) * 4
def vP(par, j): return 172 + par * 12 + j * 4
def vNM(j): return 196 + j * 4
def vQ(j, s): return 208 + (j * 4 + s) * 4
NF = 8
def aF(i): return (i % NF) * 4
aONE = 32
def aL(j): return 36 + j * 4
def V4(r): return f"v[{r}:{r+3}]"
def V2(r): return f"v[{r}:{r+1}]"
def A4(r): return f"a[{r}:{r+3}]"
def A2(r): return f"a[{r}:{r+1}]"
sW, sWL, sPRIV, sK, sV, sCNT, sTHR = 3, 28, 29, 30, 31, 32, 36
SRD_Q, SRD_K, SRD_V, SRD_O, SRD_WS = "s[12:15]", "s[16:19]", "s[20:23]", "s[24:27]", "s[40:43]"
MF = "v_mfma_f32_16x16x32_bf16"

class Cfg:
    lead = 4
    pf = 4
    ldflags = "nt"
    qflags = None
    stflags = ""
    dma_groups = (0, 2, 4, 6)
    pro_depth = 0
    stamps = False
    force_slow = False
    trace = False
    nodma = False
    nomfma = False
    novalu = False
    nods = False
    def __init__(self, **kw):
        for k, v in kw.items():
            assert hasattr(Cfg, k), k
            setattr(self, k, v)
        if self.qflags is None: self.qflags = self.ldflags

def piece(p):
    if p < 2: return ("K", 0, p)
    g, q = divmod(p - 2, 4)
    return ("K", g + 1, q) if q < 2 else ("V", g, q - 2)

def dma_ins(cfg, p):
    kind, t, h = piece(p)
    ring = KRING if kind == "K" else VRING
    m0 = f"s_add_u32 m0, s{sWL}, {ring + (t % R) * TILE + h * (BS - 1024)}"
    so = sK if kind == "K" else sV
    inc = f"s_add_u32 s{so}, s{so}, 8192" if h == 0 else None
    off = " offset:1024" if h else ""
    ld = f"buffer_load_dwordx4 v{vDMA}, {SRD_K if kind == 'K' else SRD_V}, s{so} offen{off} {cfg.ldflags} lds".replace("  ", " ")
    return m0, inc, ld

def k_read(dst, base, tslot, f):
    kb, s = divmod(f, 4)
    return [f"ds_read_b128 {A4(dst)}, v{base} offset:{tslot + kb * 4 * BS + s * 256}"]

def v_read(dst, base, tslot, b):
    o = tslot + (b >> 1) * 256 + (b & 1) * 32
    return [f"ds_read_b64_tr_b16 {A2(dst)}, v{base} offset:{o}",
            f"ds_read_b64_tr_b16 {A2(dst + 2)}, v{base} offset:{o + 4 * BS}"]

def sm_ops(par):
    exps, cvts = [], []
    for j in range(3):
        for kb in range(2):
            s = vS(par, kb, j)
            for h in range(2):
                exps += [f"v_exp_f32 v{s+2*h}, v{s+2*h}", f"v_exp_f32 v{s+2*h+1}, v{s+2*h+1}"]
                cvts.append(f"v_cvt_pk_bf16_f32 v{vP(par, j)+2*kb+h}, v{s+2*h}, v{s+2*h+1}")
    return exps, cvts

class Slot:
    def __init__(self, mfma, need=None):
        self.mfma, self.need = mfma, need
        self.scalar, self.ds, self.dma, self.valu = [], [], [], []
    def cap(self):
        return 8 - 4 * len(self.ds) - 8 * len(self.dma) - 4 * max(0, len(self.scalar) - 1) - sum(8 if "v_exp" in v else 4 for v in self.valu)

def body_slots(cfg, u):
    pf, par = cfg.pf, u & 1
    slots, gstart = [], []
    for i in range(16):
        gstart.append(len(slots))
        fr = A4(aF(i))
        for j in range(3):
            if i < pf:
                b = 8 - pf + i
                m = f"{MF} {V4(vO(j,b))}, {fr}, {V4(vP(par^1,j))}, {V4(vO(j,b))}"
            elif i < pf + 8:
                kb, s = divmod(i - pf, 4)
                d = vS(par ^ 1, kb, j)
                m = f"{MF} {V4(d)}, {fr}, {V4(vQ(j,s))}, {V4(vNM(j) if s == 0 else d)}"
            else:
                b = i - pf - 8
                m = f"{MF} {V4(vO(j,b))}, {fr}, {V4(vP(par,j))}, {V4(vO(j,b))}"
            slots.append(Slot(m, i if j == 0 else None))
        if i == pf + 8:
            for j in range(3):
                slots.append(Slot(f"{MF} {A4(aL(j))}, {A4(aONE)}, {V4(vP(par,j))}, {A4(aL(j))}"))
    for i in range(16):
        dst = aF(i + pf)
        if i < 8: rd = k_read(dst, vKRD, ((u + 1) % R) * TILE, i)
        else: rd = v_read(dst, vVRD, (u % R) * TILE, i - 8)
        slots[gstart[i]].ds = rd
    for n, g in enumerate(cfg.dma_groups):
        m0, inc, ld = dma_ins(cfg, 2 + 4 * (u + 1) + cfg.lead + n)
        slots[gstart[g]].scalar.append(m0)
        if inc: slots[gstart[g] + 1].scalar.append(inc)
        slots[gstart[g] + 1].dma.append(ld)
    return slots, gstart

def nreads(i):
    return 1 if (i % 16) < 8 else 2

def fill_sm(cfg, slots, gstart, u):
    pf, par = cfg.pf, u & 1
    head0 = gstart[pf + 8]
    order = [(s, par ^ 1) for s in range(head0, len(slots))] + [(s, par) for s in range(0, head0)]
    ops = {p: sm_ops(p) for p in (0, 1)}
    ne = nc = 0
    head_ops = []
    for s, p in order:
        sl = slots[s]
        exps, cvts = ops[p]
        ne0 = ne
        if sl.cap() >= 8 and ne < 24:
            sl.valu.append(exps[ne]); ne += 1
            if s >= head0: head_ops.append(("e", ne - 1))
        else:
            while sl.cap() >= 4 and nc < 12 and 2 * nc + 2 <= ne0:
                sl.valu.append(cvts[nc]); nc += 1
                if s >= head0: head_ops.append(("c", nc - 1))
    assert ne == 24 and nc == 12, (ne, nc)
    return head_ops

def emit_body(cfg, u, A, last_in_loop=False):
    slots, gstart = body_slots(cfg, u)
    pf = cfg.pf
    for i in range(1, 16):
        n = sum(nreads(g) for g in range(i - pf + 1, i))
        slots[gstart[i] - 1].scalar.insert(0, f"s_waitcnt lgkmcnt({n})")
    if last_in_loop:
        slots[-2].scalar.append(f"s_cmp_lt_u32 s{sCNT}, {NSTEP // R}")
        slots[gstart[13] + 1].scalar.append(f"s_add_u32 s{sCNT}, s{sCNT}, 1")
    head_ops = fill_sm(cfg, slots, gstart, u)
    n0 = sum(nreads(g) for g in range(-pf + 1, 0))
    A(f"s_waitcnt vmcnt({cfg.lead}) lgkmcnt({n0})")
    A("s_barrier")
    if cfg.trace == 1:
        A("v_mov_b32 v22, s68"); A("v_mov_b32 v23, s70")
        A("ds_write_b64 v24, v[22:23]")
        A("v_add_u32 v24, 8, v24")
        A("s_memrealtime s[68:69]"); A("s_memtime s[70:71]")
    elif cfg.trace == 2:
        g = gstart[cfg.pf + 6]
        slots[g + 1].valu += ["v_mov_b32 v22, s68", "v_mov_b32 v23, s70"]
        slots[g + 2].valu += ["v_add_u32 v24, 8, v24"]
        slots[g + 4].ds += ["ds_write_b64 v24, v[22:23]"]
        slots[g + 4].scalar += ["s_memrealtime s[68:69]"]
        slots[g + 5].scalar += ["s_memtime s[70:71]"]
    for sl in slots:
        A("s_nop 0" if cfg.nomfma else sl.mfma)
        for x in sl.scalar + ([] if cfg.nods else sl.ds) + ([] if cfg.nodma else sl.dma) + ([] if cfg.novalu else sl.valu): A(x)
    return head_ops

def rowmax(A, par, dst):
    for j in range(3):
        s0, s1 = vS(par, 0, j), vS(par, 1, j)
        A(f"v_max3_f32 v{dst+j}, v{s0}, v{s0+1}, v{s0+2}")
        A(f"v_max3_f32 v{dst+j}, v{dst+j}, v{s0+3}, v{s1}")
        A(f"v_max3_f32 v{dst+j}, v{dst+j}, v{s1+1}, v{s1+2}")
        A(f"v_max_f32 v{dst+j}, v{dst+j}, v{s1+3}")
    for op in ("v_permlane16_swap_b32", "v_permlane32_swap_b32"):
        for j in range(3): A(f"v_mov_b32 v{dst+3+j}, v{dst+j}")
        A("s_nop 1")
        for j in range(3): A(f"{op} v{dst+j}, v{dst+3+j}")
        for j in range(3): A(f"v_max_f32 v{dst+j}, v{dst+j}, v{dst+3+j}")

def stamp(cfg, A, n):
    if cfg.stamps:
        A(f"s_memrealtime s[{50+2*n}:{51+2*n}]")
        if n == 2: A("s_memtime s[64:65]")
        if n == 3: A("s_memtime s[66:67]")

def gen(cfg):
    L = []
    A = L.append
    pf = cfg.pf
    A(f"; @launch grid=(256,1,1) block=(256,1,1) lds={LDS_BYTES}")
    A('.amdgcn_target "amdgcn-amd-amdhsa--gfx950"')
    A(".text")
    A(f".globl {NAME}")
    A(".p2align 8")
    A(f".type {NAME},@function")
    A(f"{NAME}:")
    code0 = len(L)
    stamp(cfg, A, 0)
    A("s_cmp_ge_u32 s2, 256")
    A("s_cbranch_scc1 L_end")
    A("s_load_dwordx8 s[4:11], s[0:1], 0")
    if cfg.stamps: A("s_load_dwordx2 s[40:41], s[0:1], 40")
    t = vT
    A(f"v_lshrrev_b32 v{t}, 6, v0")
    A(f"v_and_b32 v{t+1}, 63, v0")
    A(f"v_readfirstlane_b32 s{sW}, v{t}")
    A(f"v_and_b32 v{t+2}, 3, v0")
    A(f"v_bfe_u32 v{t+3}, v0, 2, 2")
    A(f"v_lshrrev_b32 v{t+4}, 4, v{t+1}")
    A(f"v_lshlrev_b32 v{vQDMA}, 4, v{t+2}")
    A(f"v_lshl_add_u32 v{vQDMA}, v{t+3}, 8, v{vQDMA}")
    A(f"v_lshl_add_u32 v{vQDMA}, v{t+4}, 6, v{vQDMA}")
    A(f"v_lshl_add_u32 v{vDMA}, v{t}, 11, v{vQDMA}")
    A("s_mul_i32 s38, s2, 49152")
    A("s_lshl_b32 s39, s2, 18")
    A(f"s_mul_i32 s{sWL}, s{sW}, {2 * BS}")
    A(f"s_mul_i32 s{sPRIV}, s{sW}, {PRIVSZ}")
    A(f"s_mul_i32 s37, s{sW}, 12288")
    A(f"s_add_u32 s{sPRIV}, s{sPRIV}, {PRIV}")
    A("s_mov_b32 s14, 49152"); A("s_mov_b32 s15, 0x20000")
    A("s_mov_b32 s18, 262144"); A("s_mov_b32 s19, 0x20000")
    A("s_mov_b32 s22, 262144"); A("s_mov_b32 s23, 0x20000")
    A("s_mov_b32 s26, 49152"); A("s_mov_b32 s27, 0x20000")
    A(f"s_mov_b32 s{sK}, -8192"); A(f"s_mov_b32 s{sV}, -8192")
    A(f"s_mov_b32 m0, s{sPRIV}")
    A("s_waitcnt lgkmcnt(0)")
    A("s_add_u32 s12, s4, s38"); A("s_addc_u32 s13, s5, 0")
    nissued = 0
    def pace():
        if cfg.pro_depth and nissued > cfg.pro_depth: A(f"s_waitcnt vmcnt({cfg.pro_depth})")
    extra = ["s_add_u32 s16, s6, s39", "s_addc_u32 s17, s7, 0", "s_add_u32 s20, s8, s39", "s_addc_u32 s21, s9, 0",
             "s_add_u32 s24, s10, s38", "s_addc_u32 s25, s11, 0"]
    for i in range(12):
        hi, lo = divmod(i, 4)
        if i:
            A(f"s_add_u32 m0, s{sPRIV}, {i * BS - lo * 1024}")
            if lo == 0: A("s_add_u32 s37, s37, 4096")
            elif extra: A(extra.pop(0)); A(extra.pop(0))
            else: A("s_nop 0")
        off = f" offset:{lo * 1024}" if lo else ""
        A(f"buffer_load_dwordx4 v{vQDMA}, {SRD_Q}, s37 offen{off} {cfg.qflags} lds".replace("  ", " "))
        nissued += 1; pace()
    npro = 2 + 4 + cfg.lead
    for p in range(npro):
        m0, inc, ld = dma_ins(cfg, p)
        A(m0); A(inc if inc else "s_nop 0"); A(ld)
        nissued += 1; pace()
    A(f"v_mul_u32_u24 v{vKRD}, {BS}, v{t+3}")
    A(f"v_lshl_add_u32 v{vKRD}, v{t+2}, 6, v{vKRD}")
    A(f"v_lshl_add_u32 v{vKRD}, v{t+4}, 4, v{vKRD}")
    A(f"v_add_u32 v{vQRD}, s{sPRIV}, v{vKRD}")
    if KRING: A(f"v_add_u32 v{vKRD}, {KRING}, v{vKRD}")
    A(f"v_mul_u32_u24 v{vVRD}, {BS}, v{t+4}")
    A(f"v_lshl_add_u32 v{vVRD}, v{t+3}, 6, v{vVRD}")
    A(f"v_lshl_add_u32 v{vVRD}, v{t+2}, 3, v{vVRD}")
    A(f"v_add_u32 v{vPVRD}, s{sPRIV}, v{vVRD}")
    A(f"v_add_u32 v{vVRD}, {VRING}, v{vVRD}")
    A(f"v_and_b32 v{t+5}, 15, v0")
    A(f"v_mul_u32_u24 v{vEW}, {ESTR}, v{t+5}")
    A(f"v_lshl_add_u32 v{vEW}, v{t+4}, 3, v{vEW}")
    A(f"v_add_u32 v{vEW}, s{sPRIV}, v{vEW}")
    A(f"v_mul_u32_u24 v{vER}, {ESTR}, v{t+4}")
    A(f"v_lshl_add_u32 v{vER}, v{t+5}, 4, v{vER}")
    A(f"v_add_u32 v{vER}, s{sPRIV}, v{vER}")
    A(f"v_mul_u32_u24 v{vOST}, 12288, v{t}")
    A(f"v_lshl_add_u32 v{vOST}, v{t+1}, 4, v{vOST}")
    A(f"s_mov_b32 s34, {C_SCALE:#x}"); A(f"s_mov_b32 s35, {C_SCALE:#x}")
    A(f"s_mov_b32 s{sTHR}, {L_MAX:#x}")
    A(f"s_mov_b32 s{sCNT}, 0")
    A("s_mov_b32 s33, 0x3f803f80")
    for r in range(0, 96, 2): A(f"v_mov_b64 {V2(vO(0,0)+r)}, 0")
    for r in range(0, 12, 2): A(f"v_mov_b64 {V2(vP(1,0)+r)}, 0")
    for r in range(4): A(f"v_accvgpr_write_b32 a{aONE+r}, s33")
    for r in range(12): A(f"v_accvgpr_write_b32 a{aL(0)+r}, 0")
    for j in range(3):
        A(f"s_waitcnt vmcnt({npro + 8 - 4 * j})")
        for s in range(4):
            A(f"ds_read_b128 {V4(vQ(j,s))}, v{vQRD} offset:{j * 4 * BS + s * 256}")
        for s in range(4):
            A(f"s_waitcnt lgkmcnt({3 - s})")
            q = vQ(j, s)
            for r in range(4):
                A(f"v_lshlrev_b32 v{t+2*r}, 16, v{q+r}")
                A(f"v_and_b32 v{t+2*r+1}, 0xffff0000, v{q+r}")
            for r in range(4): A(f"v_pk_mul_f32 {V2(t+2*r)}, {V2(t+2*r)}, s[34:35]")
            for r in range(4): A(f"v_cvt_pk_bf16_f32 v{q+r}, v{t+2*r}, v{t+2*r+1}")
    stamp(cfg, A, 1)
    A(f"s_waitcnt vmcnt({npro - 2})")
    A("s_barrier")
    for f in range(8):
        for x in k_read(aF(f), vKRD, 0, f): A(x)
    for f in range(8):
        kb, s = divmod(f, 4)
        A(f"s_waitcnt lgkmcnt({7 - f})")
        for j in range(3):
            d = vS(0, kb, j)
            A(f"{MF} {V4(d)}, {A4(aF(f))}, {V4(vQ(j,s))}, {'0' if s == 0 else V4(d)}")
    for r in range(4 * pf): A(f"v_accvgpr_write_b32 a{aF(0)+r}, 0")
    rowmax(A, 0, t)
    for j in range(3):
        for r in range(4): A(f"v_sub_f32 v{vNM(j)+r}, 0, v{t+j}")
    for kb in range(2):
        for j in range(3):
            for r in range(4): A(f"v_sub_f32 v{vS(0,kb,j)+r}, v{vS(0,kb,j)+r}, v{t+j}")
    loop = []
    head_ops = None
    for u in range(R):
        head_ops = emit_body(cfg, u, loop.append, last_in_loop=(u == R - 1))
    exps, cvts = sm_ops(0)
    for k, n in sorted(head_ops, key=lambda x: x[0] != "e"):
        if k == "c": A("s_nop 0")
        A(exps[n] if k == "e" else cvts[n])
    stamp(cfg, A, 2)
    if cfg.trace:
        A(f"s_add_u32 s37, s{sPRIV}, {13312 - (8 if cfg.trace == 2 else 0)}")
        A("v_mov_b32 v24, s37")
        A("s_memrealtime s[68:69]"); A("s_memtime s[70:71]")
        A("s_waitcnt lgkmcnt(0)")
    pro = L[code0:]
    A(".p2align 6")
    A("L_loop:")
    L.extend(loop)
    A("s_cbranch_scc1 L_loop")
    tail0 = len(L)
    stamp(cfg, A, 3)
    for i in range(pf):
        A(f"s_waitcnt lgkmcnt({2 * (pf - 1 - i)})")
        b = 8 - pf + i
        for j in range(3):
            A(f"{MF} {V4(vO(j,b))}, {A4(aF(i))}, {V4(vP(1,j))}, {V4(vO(j,b))}")
    for j in range(3): A(f"v_accvgpr_read_b32 v{t+j}, a{aL(j)}")
    A(f"v_add_f32 v{t+4}, v{t}, v{t+1}")
    A(f"v_add_f32 v{t+4}, v{t+4}, v{t+2}")
    A(f"v_cmp_ngt_f32 vcc, s{sTHR}, v{t+4}")
    A("s_nop 4")
    A("s_branch L_slow" if cfg.force_slow else "s_cbranch_vccnz L_slow")
    A("L_epi:")
    epi0 = len(L)
    for j in range(3): A(f"v_rcp_f32 v{t+2*j+4}, v{t+j}")
    A("s_nop 0")
    for j in range(3):
        rl = t + 2 * j + 4
        for b in range(8):
            o = vO(j, b)
            A(f"v_pk_mul_f32 {V2(o)}, {V2(o)}, {V2(rl)} op_sel_hi:[1,0]")
            A(f"v_pk_mul_f32 {V2(o+2)}, {V2(o+2)}, {V2(rl)} op_sel_hi:[1,0]")
            A(f"v_cvt_pk_bf16_f32 v{o}, v{o}, v{o+1}")
            A(f"v_cvt_pk_bf16_f32 v{o+1}, v{o+2}, v{o+3}")
            A(f"ds_write_b64 v{vEW}, {V2(o)} offset:{j * 16 * ESTR + b * 32}")
        A("s_waitcnt lgkmcnt(0)")
        for i in range(4):
            A(f"ds_read_b128 {V4(vS(0,0,0) + (j*4+i)*4)}, v{vER} offset:{(j * 16 + i * 4) * ESTR}")
        A(f"s_mov_b32 s37, {j * 4096}")
        for i in range(4):
            A(f"s_waitcnt lgkmcnt({3 - i})")
            off = f" offset:{i * 1024}" if i else ""
            A(f"buffer_store_dwordx4 {V4(vS(0,0,0) + (j*4+i)*4)}, v{vOST}, {SRD_O}, s37 offen{off} {cfg.stflags}".rstrip())
    if cfg.stamps:
        stamp(cfg, A, 4)
        A("s_waitcnt vmcnt(0)")
        stamp(cfg, A, 5)
        A("s_mov_b32 s42, 0x100000"); A("s_mov_b32 s43, 0x20000")
        A("s_getreg_b32 s62, hwreg(HW_REG_XCC_ID)")
        A("s_waitcnt lgkmcnt(0)")
        for n in range(6): A(f"v_mov_b32 v{12+n}, s{50+2*n}")
        A("s_sub_u32 s66, s66, s64"); A("v_mov_b32 v18, s62"); A("v_mov_b32 v19, s66")
        A(f"s_lshl_b32 s37, s2, 2"); A(f"s_add_u32 s37, s37, s{sW}"); A("s_lshl_b32 s37, s37, 5")
        A("v_mov_b32 v10, s37")
        A(f"buffer_store_dwordx4 v[12:15], v10, {SRD_WS}, 0 offen")
        A(f"buffer_store_dwordx4 v[16:19], v10, {SRD_WS}, 0 offen offset:16")
        if cfg.trace:
            A("v_mov_b32 v22, s68"); A("v_mov_b32 v23, s70")
            A("ds_write_b64 v24, v[22:23]" + (" offset:8" if cfg.trace == 2 else ""))
            A("v_and_b32 v25, 63, v0")
            A("v_lshlrev_b32 v25, 3, v25")
            A(f"s_add_u32 s38, s{sPRIV}, 13312")
            A("v_add_u32 v24, s38, v25")
            A("s_waitcnt lgkmcnt(0)")
            A("ds_read_b64 v[22:23], v24")
            A("s_lshl_b32 s37, s37, 4"); A("s_add_u32 s37, s37, 0x10000")
            A("s_waitcnt lgkmcnt(0)")
            A(f"buffer_store_dwordx2 v[22:23], v25, {SRD_WS}, s37 offen")
    A("L_end:")
    A("s_endpgm")
    tail = L[tail0:]
    epi = L[epi0:]
    slow0 = len(L)
    A("L_slow:")
    A("s_waitcnt vmcnt(0)")
    A("s_nop 7")
    vM, vAL = vNM(0), vNM(0) + 4
    for r in range(0, 96, 2): A(f"v_mov_b64 {V2(vO(0,0)+r)}, 0")
    for r in range(12): A(f"v_accvgpr_write_b32 a{aL(0)+r}, 0")
    for j in range(3): A(f"v_mov_b32 v{vM+j}, 0xff7fffff")
    A(f"s_mov_b32 s{sK}, 0")
    slowl0 = len(L)
    A("L_slow_loop:")
    for srd, base in ((SRD_K, 0), (SRD_V, TILE)):
        for a in range(8):
            hi, lo = divmod(a, 4)
            A(f"s_add_u32 m0, s{sPRIV}, {base + a * BS - lo * 1024}")
            A(f"s_add_u32 s37, s{sK}, {hi * 4096}")
            off = f" offset:{lo * 1024}" if lo else ""
            A(f"buffer_load_dwordx4 v{vQDMA}, {srd}, s37 offen{off} lds")
    A("s_waitcnt vmcnt(0)")
    for f in range(8):
        for x in k_read(aF(f), vQRD, 0, f): A(x)
    A("s_waitcnt lgkmcnt(0)")
    for f in range(8):
        kb, s = divmod(f, 4)
        for j in range(3):
            d = vS(0, kb, j)
            A(f"{MF} {V4(d)}, {A4(aF(f))}, {V4(vQ(j,s))}, {'0' if s == 0 else V4(d)}")
    A("s_nop 7")
    for b in range(8):
        for x in v_read(aF(b), vPVRD, TILE, b): A(x)
    rowmax(A, 0, t)
    for j in range(3): A(f"v_max_f32 v{t+j}, v{t+j}, v{vM+j}")
    for j in range(3): A(f"v_sub_f32 v{vAL+j}, v{vM+j}, v{t+j}")
    for j in range(3): A(f"v_exp_f32 v{vAL+j}, v{vAL+j}")
    for j in range(3): A(f"v_mov_b32 v{vM+j}, v{t+j}")
    for j in range(3):
        for r in range(32): A(f"v_mul_f32 v{vO(j,0)+r}, v{vO(j,0)+r}, v{vAL+j}")
        for r in range(4):
            A(f"v_accvgpr_read_b32 v{t+6}, a{aL(j)+r}")
            A(f"v_mul_f32 v{t+6}, v{t+6}, v{vAL+j}")
            A(f"v_accvgpr_write_b32 a{aL(j)+r}, v{t+6}")
    for kb in range(2):
        for j in range(3):
            for r in range(4): A(f"v_sub_f32 v{vS(0,kb,j)+r}, v{vS(0,kb,j)+r}, v{vM+j}")
    exps, cvts = sm_ops(0)
    for x in exps: A(x)
    A("s_nop 0")
    for x in cvts: A(x)
    A("s_waitcnt lgkmcnt(0)")
    A("s_nop 1")
    for j in range(3): A(f"{MF} {A4(aL(j))}, {A4(aONE)}, {V4(vP(0,j))}, {A4(aL(j))}")
    for b in range(8):
        for j in range(3):
            A(f"{MF} {V4(vO(j,b))}, {A4(aF(b))}, {V4(vP(0,j))}, {V4(vO(j,b))}")
    A(f"s_add_u32 s{sK}, s{sK}, 8192")
    A(f"s_cmp_lt_u32 s{sK}, 262144")
    A("s_cbranch_scc1 L_slow_loop")
    slowl1 = len(L)
    A("s_nop 7")
    for j in range(3): A(f"v_accvgpr_read_b32 v{t+j}, a{aL(j)}")
    A("s_branch L_epi")
    errs = check_hazards(pro + loop + loop + tail, "fast")
    errs += check_hazards(L[tail0:epi0] + L[slow0:slowl1] + L[slowl0:] + epi, "slow")
    if errs:
        raise RuntimeError("\n".join(errs))
    A('.section .rodata,"a"')
    A(".p2align 6")
    A(f".amdhsa_kernel {NAME}")
    A("  .amdhsa_next_free_vgpr 304")
    A("  .amdhsa_next_free_sgpr 102")
    A("  .amdhsa_accum_offset 256")
    A("  .amdhsa_group_segment_fixed_size 0")
    A("  .amdhsa_kernarg_size 48")
    A("  .amdhsa_user_sgpr_count 2")
    A("  .amdhsa_user_sgpr_kernarg_segment_ptr 1")
    A("  .amdhsa_system_sgpr_workgroup_id_x 1")
    A("  .amdhsa_float_denorm_mode_32 3")
    A(".end_amdhsa_kernel")
    out = []
    for l in L:
        out.append(l if (l.endswith(":") or l.startswith((".", ";", " "))) else "    " + l)
    return "\n".join(out) + "\n"

if __name__ == "__main__":
    kw = {}
    for a in sys.argv[1:]:
        k, v = a.split("=", 1)
        try: v = eval(v)
        except Exception: pass
        kw[k] = v
    sys.stdout.write(gen(Cfg(**kw)))
```

```python
import math, struct, sys
from asmlib import Ins, check_hazards

NAME = "standalone__mha_softmax__near_ridge_kernel"
BS = 1056
TILE = 8 * BS
R = 4
KRING = 0
VRING = R * TILE
PRIV = 2 * R * TILE
PRIVSZ = 2 * TILE
LDS_BYTES = PRIV + 4 * PRIVSZ
ESTR = 272
NSTEP = 32

def f2u(x): return struct.unpack("<I", struct.pack("<f", x))[0]
C_SCALE = f2u(math.log2(math.e) / math.sqrt(128.0))
L_MAX = f2u(2.0 ** 24)

vDMA, vKRD, vVRD, vQDMA, vQRD, vPVRD, vEW, vER, vOST = 1, 2, 3, 4, 5, 6, 7, 8, 9
vT = 10
def vO(j, b): return 28 + (j * 8 + b) * 4
def vS(par, kb, j): return 124 + par * 24 + (kb * 3 + j) * 4
def vP(par, j): return 172 + par * 12 + j * 4
def vNM(j): return 196 + j * 4
def vQ(j, s): return 208 + (j * 4 + s) * 4
NF = 8
def aF(i): return (i % NF) * 4
aONE = 32
def aL(j): return 36 + j * 4
def V4(r): return f"v[{r}:{r+3}]"
def V2(r): return f"v[{r}:{r+1}]"
def A4(r): return f"a[{r}:{r+3}]"
def A2(r): return f"a[{r}:{r+1}]"
sW, sWL, sPRIV, sK, sV, sCNT, sTHR = 3, 28, 29, 30, 31, 32, 36
SRD_Q, SRD_K, SRD_V, SRD_O, SRD_WS = "s[12:15]", "s[16:19]", "s[20:23]", "s[24:27]", "s[40:43]"
MF = "v_mfma_f32_16x16x32_bf16"

class Cfg:
    lead = 4
    pf = 4
    ldflags = "nt"
    qflags = None
    stflags = ""
    dma_groups = (0, 2, 4, 6)
    pro_depth = 0
    stamps = False
    force_slow = False
    enc = None
    encwg = None
    trace = False
    nodma = False
    nomfma = False
    novalu = False
    nods = False
    def __init__(self, **kw):
        for k, v in kw.items():
            assert hasattr(Cfg, k), k
            setattr(self, k, v)
        if self.qflags is None: self.qflags = self.ldflags

def piece(p):
    if p < 2: return ("K", 0, p)
    g, q = divmod(p - 2, 4)
    return ("K", g + 1, q) if q < 2 else ("V", g, q - 2)

def dma_ins(cfg, p):
    kind, t, h = piece(p)
    ring = KRING if kind == "K" else VRING
    m0 = f"s_add_u32 m0, s{sWL}, {ring + (t % R) * TILE + h * (BS - 1024)}"
    so = sK if kind == "K" else sV
    inc = f"s_add_u32 s{so}, s{so}, 8192" if h == 0 else None
    off = " offset:1024" if h else ""
    ld = f"buffer_load_dwordx4 v{vDMA}, {SRD_K if kind == 'K' else SRD_V}, s{so} offen{off} {cfg.ldflags} lds".replace("  ", " ")
    return m0, inc, ld

def k_read(dst, base, tslot, f):
    kb, s = divmod(f, 4)
    return [f"ds_read_b128 {A4(dst)}, v{base} offset:{tslot + kb * 4 * BS + s * 256}"]

def v_read(dst, base, tslot, b):
    o = tslot + (b >> 1) * 256 + (b & 1) * 32
    return [f"ds_read_b64_tr_b16 {A2(dst)}, v{base} offset:{o}",
            f"ds_read_b64_tr_b16 {A2(dst + 2)}, v{base} offset:{o + 4 * BS}"]

def sm_ops(par):
    exps, cvts = [], []
    for j in range(3):
        for kb in range(2):
            s = vS(par, kb, j)
            for h in range(2):
                exps += [f"v_exp_f32 v{s+2*h}, v{s+2*h}", f"v_exp_f32 v{s+2*h+1}, v{s+2*h+1}"]
                cvts.append(f"v_cvt_pk_bf16_f32 v{vP(par, j)+2*kb+h}, v{s+2*h}, v{s+2*h+1}")
    return exps, cvts

class Slot:
    def __init__(self, mfma, need=None):
        self.mfma, self.need = mfma, need
        self.scalar, self.ds, self.dma, self.valu = [], [], [], []
    def cap(self):
        return 8 - 4 * len(self.ds) - 8 * len(self.dma) - 4 * max(0, len(self.scalar) - 1) - sum(8 if "v_exp" in v else 4 for v in self.valu)

def body_slots(cfg, u):
    pf, par = cfg.pf, u & 1
    slots, gstart = [], []
    for i in range(16):
        gstart.append(len(slots))
        fr = A4(aF(i))
        for j in range(3):
            if i < pf:
                b = 8 - pf + i
                m = f"{MF} {V4(vO(j,b))}, {fr}, {V4(vP(par^1,j))}, {V4(vO(j,b))}"
            elif i < pf + 8:
                kb, s = divmod(i - pf, 4)
                d = vS(par ^ 1, kb, j)
                m = f"{MF} {V4(d)}, {fr}, {V4(vQ(j,s))}, {V4(vNM(j) if s == 0 else d)}"
            else:
                b = i - pf - 8
                m = f"{MF} {V4(vO(j,b))}, {fr}, {V4(vP(par,j))}, {V4(vO(j,b))}"
            slots.append(Slot(m, i if j == 0 else None))
        if i == pf + 8:
            for j in range(3):
                slots.append(Slot(f"{MF} {A4(aL(j))}, {A4(aONE)}, {V4(vP(par,j))}, {A4(aL(j))}"))
    for i in range(16):
        dst = aF(i + pf)
        if i < 8: rd = k_read(dst, vKRD, ((u + 1) % R) * TILE, i)
        else: rd = v_read(dst, vVRD, (u % R) * TILE, i - 8)
        slots[gstart[i]].ds = rd
    for n, g in enumerate(cfg.dma_groups):
        m0, inc, ld = dma_ins(cfg, 2 + 4 * (u + 1) + cfg.lead + n)
        slots[gstart[g]].scalar.append(m0)
        if inc: slots[gstart[g] + 1].scalar.append(inc)
        slots[gstart[g] + 1].dma.append(ld)
    return slots, gstart

def nreads(i):
    return 1 if (i % 16) < 8 else 2

def fill_sm(cfg, slots, gstart, u):
    pf, par = cfg.pf, u & 1
    head0 = gstart[pf + 8]
    order = [(s, par ^ 1) for s in range(head0, len(slots))] + [(s, par) for s in range(0, head0)]
    ops = {p: sm_ops(p) for p in (0, 1)}
    ne = nc = 0
    head_ops = []
    for s, p in order:
        sl = slots[s]
        exps, cvts = ops[p]
        ne0 = ne
        if sl.cap() >= 8 and ne < 24:
            sl.valu.append(exps[ne]); ne += 1
            if s >= head0: head_ops.append(("e", ne - 1))
        else:
            while sl.cap() >= 4 and nc < 12 and 2 * nc + 2 <= ne0:
                sl.valu.append(cvts[nc]); nc += 1
                if s >= head0: head_ops.append(("c", nc - 1))
    assert ne == 24 and nc == 12, (ne, nc)
    return head_ops

def emit_body(cfg, u, A, last_in_loop=False):
    slots, gstart = body_slots(cfg, u)
    pf = cfg.pf
    for i in range(1, 16):
        n = sum(nreads(g) for g in range(i - pf + 1, i))
        slots[gstart[i] - 1].scalar.insert(0, f"s_waitcnt lgkmcnt({n})")
    if last_in_loop:
        slots[-2].scalar.append(f"s_cmp_lt_u32 s{sCNT}, {NSTEP // R}")
        slots[gstart[13] + 1].scalar.append(f"s_add_u32 s{sCNT}, s{sCNT}, 1")
    head_ops = fill_sm(cfg, slots, gstart, u)
    n0 = sum(nreads(g) for g in range(-pf + 1, 0))
    A(f"s_waitcnt vmcnt({cfg.lead}) lgkmcnt({n0})")
    A("s_barrier")
    if cfg.trace == 1:
        A("v_mov_b32 v22, s68"); A("v_mov_b32 v23, s70")
        A("ds_write_b64 v24, v[22:23]")
        A("v_add_u32 v24, 8, v24")
        A("s_memrealtime s[68:69]"); A("s_memtime s[70:71]")
    elif cfg.trace == 2:
        g = gstart[cfg.pf + 6]
        slots[g + 1].valu += ["v_mov_b32 v22, s68", "v_mov_b32 v23, s70"]
        slots[g + 2].valu += ["v_add_u32 v24, 8, v24"]
        slots[g + 4].ds += ["ds_write_b64 v24, v[22:23]"]
        slots[g + 4].scalar += ["s_memrealtime s[68:69]"]
        slots[g + 5].scalar += ["s_memtime s[70:71]"]
    for sl in slots:
        A("s_nop 0" if cfg.nomfma else sl.mfma)
        for x in sl.scalar + ([] if cfg.nods else sl.ds) + ([] if cfg.nodma else sl.dma) + ([] if cfg.novalu else sl.valu): A(x)
    return head_ops

def rowmax(A, par, dst):
    for j in range(3):
        s0, s1 = vS(par, 0, j), vS(par, 1, j)
        A(f"v_max3_f32 v{dst+j}, v{s0}, v{s0+1}, v{s0+2}")
        A(f"v_max3_f32 v{dst+j}, v{dst+j}, v{s0+3}, v{s1}")
        A(f"v_max3_f32 v{dst+j}, v{dst+j}, v{s1+1}, v{s1+2}")
        A(f"v_max_f32 v{dst+j}, v{dst+j}, v{s1+3}")
    for op in ("v_permlane16_swap_b32", "v_permlane32_swap_b32"):
        for j in range(3): A(f"v_mov_b32 v{dst+3+j}, v{dst+j}")
        A("s_nop 1")
        for j in range(3): A(f"{op} v{dst+j}, v{dst+3+j}")
        for j in range(3): A(f"v_max_f32 v{dst+j}, v{dst+j}, v{dst+3+j}")

def stamp(cfg, A, n):
    if cfg.enc is not None and n in (0, cfg.enc):
        A(f"s_memrealtime s[{50+2*n}:{51+2*n}]")
    if cfg.stamps:
        A(f"s_memrealtime s[{50+2*n}:{51+2*n}]")
        if n == 2: A("s_memtime s[64:65]")
        if n == 3: A("s_memtime s[66:67]")

def gen(cfg):
    L = []
    A = L.append
    pf = cfg.pf
    A(f"; @launch grid=(256,1,1) block=(256,1,1) lds={LDS_BYTES}")
    A('.amdgcn_target "amdgcn-amd-amdhsa--gfx950"')
    A(".text")
    A(f".globl {NAME}")
    A(".p2align 8")
    A(f".type {NAME},@function")
    A(f"{NAME}:")
    code0 = len(L)
    stamp(cfg, A, 0)
    A("s_cmp_ge_u32 s2, 256")
    A("s_cbranch_scc1 L_end")
    A("s_load_dwordx8 s[4:11], s[0:1], 0")
    if cfg.stamps: A("s_load_dwordx2 s[40:41], s[0:1], 40")
    t = vT
    A(f"v_lshrrev_b32 v{t}, 6, v0")
    A(f"v_and_b32 v{t+1}, 63, v0")
    A(f"v_readfirstlane_b32 s{sW}, v{t}")
    A(f"v_and_b32 v{t+2}, 3, v0")
    A(f"v_bfe_u32 v{t+3}, v0, 2, 2")
    A(f"v_lshrrev_b32 v{t+4}, 4, v{t+1}")
    A(f"v_lshlrev_b32 v{vQDMA}, 4, v{t+2}")
    A(f"v_lshl_add_u32 v{vQDMA}, v{t+3}, 8, v{vQDMA}")
    A(f"v_lshl_add_u32 v{vQDMA}, v{t+4}, 6, v{vQDMA}")
    A(f"v_lshl_add_u32 v{vDMA}, v{t}, 11, v{vQDMA}")
    A("s_mul_i32 s38, s2, 49152")
    A("s_lshl_b32 s39, s2, 18")
    A(f"s_mul_i32 s{sWL}, s{sW}, {2 * BS}")
    A(f"s_mul_i32 s{sPRIV}, s{sW}, {PRIVSZ}")
    A(f"s_mul_i32 s37, s{sW}, 12288")
    A(f"s_add_u32 s{sPRIV}, s{sPRIV}, {PRIV}")
    A("s_mov_b32 s14, 49152"); A("s_mov_b32 s15, 0x20000")
    A("s_mov_b32 s18, 262144"); A("s_mov_b32 s19, 0x20000")
    A("s_mov_b32 s22, 262144"); A("s_mov_b32 s23, 0x20000")
    A("s_mov_b32 s26, 49152"); A("s_mov_b32 s27, 0x20000")
    A(f"s_mov_b32 s{sK}, -8192"); A(f"s_mov_b32 s{sV}, -8192")
    A(f"s_mov_b32 m0, s{sPRIV}")
    A("s_waitcnt lgkmcnt(0)")
    if cfg.enc == 6: stamp(cfg, A, 6)
    A("s_add_u32 s12, s4, s38"); A("s_addc_u32 s13, s5, 0")
    nissued = 0
    def pace():
        if cfg.pro_depth and nissued > cfg.pro_depth: A(f"s_waitcnt vmcnt({cfg.pro_depth})")
    extra = ["s_add_u32 s16, s6, s39", "s_addc_u32 s17, s7, 0", "s_add_u32 s20, s8, s39", "s_addc_u32 s21, s9, 0",
             "s_add_u32 s24, s10, s38", "s_addc_u32 s25, s11, 0"]
    for i in range(12):
        hi, lo = divmod(i, 4)
        if i:
            A(f"s_add_u32 m0, s{sPRIV}, {i * BS - lo * 1024}")
            if lo == 0: A("s_add_u32 s37, s37, 4096")
            elif extra: A(extra.pop(0)); A(extra.pop(0))
            else: A("s_nop 0")
        off = f" offset:{lo * 1024}" if lo else ""
        A(f"buffer_load_dwordx4 v{vQDMA}, {SRD_Q}, s37 offen{off} {cfg.qflags} lds".replace("  ", " "))
        nissued += 1; pace()
    npro = 2 + 4 + cfg.lead
    for p in range(npro):
        m0, inc, ld = dma_ins(cfg, p)
        A(m0); A(inc if inc else "s_nop 0"); A(ld)
        nissued += 1; pace()
    A(f"v_mul_u32_u24 v{vKRD}, {BS}, v{t+3}")
    A(f"v_lshl_add_u32 v{vKRD}, v{t+2}, 6, v{vKRD}")
    A(f"v_lshl_add_u32 v{vKRD}, v{t+4}, 4, v{vKRD}")
    A(f"v_add_u32 v{vQRD}, s{sPRIV}, v{vKRD}")
    if KRING: A(f"v_add_u32 v{vKRD}, {KRING}, v{vKRD}")
    A(f"v_mul_u32_u24 v{vVRD}, {BS}, v{t+4}")
    A(f"v_lshl_add_u32 v{vVRD}, v{t+3}, 6, v{vVRD}")
    A(f"v_lshl_add_u32 v{vVRD}, v{t+2}, 3, v{vVRD}")
    A(f"v_add_u32 v{vPVRD}, s{sPRIV}, v{vVRD}")
    A(f"v_add_u32 v{vVRD}, {VRING}, v{vVRD}")
    A(f"v_and_b32 v{t+5}, 15, v0")
    A(f"v_mul_u32_u24 v{vEW}, {ESTR}, v{t+5}")
    A(f"v_lshl_add_u32 v{vEW}, v{t+4}, 3, v{vEW}")
    A(f"v_add_u32 v{vEW}, s{sPRIV}, v{vEW}")
    A(f"v_mul_u32_u24 v{vER}, {ESTR}, v{t+4}")
    A(f"v_lshl_add_u32 v{vER}, v{t+5}, 4, v{vER}")
    A(f"v_add_u32 v{vER}, s{sPRIV}, v{vER}")
    A(f"v_mul_u32_u24 v{vOST}, 12288, v{t}")
    A(f"v_lshl_add_u32 v{vOST}, v{t+1}, 4, v{vOST}")
    A(f"s_mov_b32 s34, {C_SCALE:#x}"); A(f"s_mov_b32 s35, {C_SCALE:#x}")
    A(f"s_mov_b32 s{sTHR}, {L_MAX:#x}")
    A(f"s_mov_b32 s{sCNT}, 0")
    A("s_mov_b32 s33, 0x3f803f80")
    for r in range(0, 96, 2): A(f"v_mov_b64 {V2(vO(0,0)+r)}, 0")
    for r in range(0, 12, 2): A(f"v_mov_b64 {V2(vP(1,0)+r)}, 0")
    for r in range(4): A(f"v_accvgpr_write_b32 a{aONE+r}, s33")
    for r in range(12): A(f"v_accvgpr_write_b32 a{aL(0)+r}, 0")
    for j in range(3):
        A(f"s_waitcnt vmcnt({npro + 8 - 4 * j})")
        for s in range(4):
            A(f"ds_read_b128 {V4(vQ(j,s))}, v{vQRD} offset:{j * 4 * BS + s * 256}")
        for s in range(4):
            A(f"s_waitcnt lgkmcnt({3 - s})")
            q = vQ(j, s)
            for r in range(4):
                A(f"v_lshlrev_b32 v{t+2*r}, 16, v{q+r}")
                A(f"v_and_b32 v{t+2*r+1}, 0xffff0000, v{q+r}")
            for r in range(4): A(f"v_pk_mul_f32 {V2(t+2*r)}, {V2(t+2*r)}, s[34:35]")
            for r in range(4): A(f"v_cvt_pk_bf16_f32 v{q+r}, v{t+2*r}, v{t+2*r+1}")
    stamp(cfg, A, 1)
    A(f"s_waitcnt vmcnt({npro - 2})")
    A("s_barrier")
    for f in range(8):
        for x in k_read(aF(f), vKRD, 0, f): A(x)
    for f in range(8):
        kb, s = divmod(f, 4)
        A(f"s_waitcnt lgkmcnt({7 - f})")
        for j in range(3):
            d = vS(0, kb, j)
            A(f"{MF} {V4(d)}, {A4(aF(f))}, {V4(vQ(j,s))}, {'0' if s == 0 else V4(d)}")
    for r in range(4 * pf): A(f"v_accvgpr_write_b32 a{aF(0)+r}, 0")
    rowmax(A, 0, t)
    for j in range(3):
        for r in range(4): A(f"v_sub_f32 v{vNM(j)+r}, 0, v{t+j}")
    for kb in range(2):
        for j in range(3):
            for r in range(4): A(f"v_sub_f32 v{vS(0,kb,j)+r}, v{vS(0,kb,j)+r}, v{t+j}")
    loop = []
    head_ops = None
    for u in range(R):
        head_ops = emit_body(cfg, u, loop.append, last_in_loop=(u == R - 1))
    exps, cvts = sm_ops(0)
    for k, n in sorted(head_ops, key=lambda x: x[0] != "e"):
        if k == "c": A("s_nop 0")
        A(exps[n] if k == "e" else cvts[n])
    stamp(cfg, A, 2)
    if cfg.trace:
        A(f"s_add_u32 s37, s{sPRIV}, {13312 - (8 if cfg.trace == 2 else 0)}")
        A("v_mov_b32 v24, s37")
        A("s_memrealtime s[68:69]"); A("s_memtime s[70:71]")
        A("s_waitcnt lgkmcnt(0)")
    pro = L[code0:]
    A(".p2align 6")
    A("L_loop:")
    L.extend(loop)
    A("s_cbranch_scc1 L_loop")
    tail0 = len(L)
    stamp(cfg, A, 3)
    for i in range(pf):
        A(f"s_waitcnt lgkmcnt({2 * (pf - 1 - i)})")
        b = 8 - pf + i
        for j in range(3):
            A(f"{MF} {V4(vO(j,b))}, {A4(aF(i))}, {V4(vP(1,j))}, {V4(vO(j,b))}")
    for j in range(3): A(f"v_accvgpr_read_b32 v{t+j}, a{aL(j)}")
    A(f"v_add_f32 v{t+4}, v{t}, v{t+1}")
    A(f"v_add_f32 v{t+4}, v{t+4}, v{t+2}")
    A(f"v_cmp_ngt_f32 vcc, s{sTHR}, v{t+4}")
    A("s_nop 4")
    A("s_branch L_slow" if cfg.force_slow else "s_cbranch_vccnz L_slow")
    A("L_epi:")
    epi0 = len(L)
    for j in range(3): A(f"v_rcp_f32 v{t+2*j+4}, v{t+j}")
    A("s_nop 0")
    for j in range(3):
        rl = t + 2 * j + 4
        for b in range(8):
            o = vO(j, b)
            A(f"v_pk_mul_f32 {V2(o)}, {V2(o)}, {V2(rl)} op_sel_hi:[1,0]")
            A(f"v_pk_mul_f32 {V2(o+2)}, {V2(o+2)}, {V2(rl)} op_sel_hi:[1,0]")
            A(f"v_cvt_pk_bf16_f32 v{o}, v{o}, v{o+1}")
            A(f"v_cvt_pk_bf16_f32 v{o+1}, v{o+2}, v{o+3}")
            A(f"ds_write_b64 v{vEW}, {V2(o)} offset:{j * 16 * ESTR + b * 32}")
        A("s_waitcnt lgkmcnt(0)")
        for i in range(4):
            A(f"ds_read_b128 {V4(vS(0,0,0) + (j*4+i)*4)}, v{vER} offset:{(j * 16 + i * 4) * ESTR}")
        A(f"s_mov_b32 s37, {j * 4096}")
        for i in range(4):
            A(f"s_waitcnt lgkmcnt({3 - i})")
            off = f" offset:{i * 1024}" if i else ""
            A(f"buffer_store_dwordx4 {V4(vS(0,0,0) + (j*4+i)*4)}, v{vOST}, {SRD_O}, s37 offen{off} {cfg.stflags}".rstrip())
    if cfg.stamps:
        stamp(cfg, A, 4)
        A("s_waitcnt vmcnt(0)")
        stamp(cfg, A, 5)
        A("s_mov_b32 s42, 0x100000"); A("s_mov_b32 s43, 0x20000")
        A("s_getreg_b32 s62, hwreg(HW_REG_XCC_ID)")
        A("s_waitcnt lgkmcnt(0)")
        for n in range(6): A(f"v_mov_b32 v{12+n}, s{50+2*n}")
        A("s_sub_u32 s66, s66, s64"); A("v_mov_b32 v18, s62"); A("v_mov_b32 v19, s66")
        A(f"s_lshl_b32 s37, s2, 2"); A(f"s_add_u32 s37, s37, s{sW}"); A("s_lshl_b32 s37, s37, 5")
        A("v_mov_b32 v10, s37")
        A(f"buffer_store_dwordx4 v[12:15], v10, {SRD_WS}, 0 offen")
        A(f"buffer_store_dwordx4 v[16:19], v10, {SRD_WS}, 0 offen offset:16")
        if cfg.trace:
            A("v_mov_b32 v22, s68"); A("v_mov_b32 v23, s70")
            A("ds_write_b64 v24, v[22:23]" + (" offset:8" if cfg.trace == 2 else ""))
            A("v_and_b32 v25, 63, v0")
            A("v_lshlrev_b32 v25, 3, v25")
            A(f"s_add_u32 s38, s{sPRIV}, 13312")
            A("v_add_u32 v24, s38, v25")
            A("s_waitcnt lgkmcnt(0)")
            A("ds_read_b64 v[22:23], v24")
            A("s_lshl_b32 s37, s37, 4"); A("s_add_u32 s37, s37, 0x10000")
            A("s_waitcnt lgkmcnt(0)")
            A(f"buffer_store_dwordx2 v[22:23], v25, {SRD_WS}, s37 offen")
    if cfg.enc is not None:
        stamp(cfg, A, 4)
        A("s_waitcnt vmcnt(0)")
        stamp(cfg, A, 5)
        A("s_waitcnt lgkmcnt(0)")
        if cfg.encwg is not None:
            A(f"s_cmp_lg_u32 s2, {cfg.encwg}")
            A("s_cbranch_scc1 L_end")
        A(f"s_sub_u32 s38, s{50+2*cfg.enc}, s50")
        A("s_mul_i32 s38, s38, 10")
        A("s_add_u32 s38, s38, 10000")
        A("L_spin:")
        A("s_sleep 4")
        A("s_memrealtime s[72:73]")
        A("s_waitcnt lgkmcnt(0)")
        A("s_sub_u32 s72, s72, s50")
        A("s_cmp_lt_u32 s72, s38")
        A("s_cbranch_scc1 L_spin")
    A("L_end:")
    A("s_endpgm")
    tail = L[tail0:]
    epi = L[epi0:]
    slow0 = len(L)
    A("L_slow:")
    A("s_waitcnt vmcnt(0)")
    A("s_nop 7")
    vM, vAL = vNM(0), vNM(0) + 4
    for r in range(0, 96, 2): A(f"v_mov_b64 {V2(vO(0,0)+r)}, 0")
    for r in range(12): A(f"v_accvgpr_write_b32 a{aL(0)+r}, 0")
    for j in range(3): A(f"v_mov_b32 v{vM+j}, 0xff7fffff")
    A(f"s_mov_b32 s{sK}, 0")
    slowl0 = len(L)
    A("L_slow_loop:")
    for srd, base in ((SRD_K, 0), (SRD_V, TILE)):
        for a in range(8):
            hi, lo = divmod(a, 4)
            A(f"s_add_u32 m0, s{sPRIV}, {base + a * BS - lo * 1024}")
            A(f"s_add_u32 s37, s{sK}, {hi * 4096}")
            off = f" offset:{lo * 1024}" if lo else ""
            A(f"buffer_load_dwordx4 v{vQDMA}, {srd}, s37 offen{off} lds")
    A("s_waitcnt vmcnt(0)")
    for f in range(8):
        for x in k_read(aF(f), vQRD, 0, f): A(x)
    A("s_waitcnt lgkmcnt(0)")
    for f in range(8):
        kb, s = divmod(f, 4)
        for j in range(3):
            d = vS(0, kb, j)
            A(f"{MF} {V4(d)}, {A4(aF(f))}, {V4(vQ(j,s))}, {'0' if s == 0 else V4(d)}")
    A("s_nop 7")
    for b in range(8):
        for x in v_read(aF(b), vPVRD, TILE, b): A(x)
    rowmax(A, 0, t)
    for j in range(3): A(f"v_max_f32 v{t+j}, v{t+j}, v{vM+j}")
    for j in range(3): A(f"v_sub_f32 v{vAL+j}, v{vM+j}, v{t+j}")
    for j in range(3): A(f"v_exp_f32 v{vAL+j}, v{vAL+j}")
    for j in range(3): A(f"v_mov_b32 v{vM+j}, v{t+j}")
    for j in range(3):
        for r in range(32): A(f"v_mul_f32 v{vO(j,0)+r}, v{vO(j,0)+r}, v{vAL+j}")
        for r in range(4):
            A(f"v_accvgpr_read_b32 v{t+6}, a{aL(j)+r}")
            A(f"v_mul_f32 v{t+6}, v{t+6}, v{vAL+j}")
            A(f"v_accvgpr_write_b32 a{aL(j)+r}, v{t+6}")
    for kb in range(2):
        for j in range(3):
            for r in range(4): A(f"v_sub_f32 v{vS(0,kb,j)+r}, v{vS(0,kb,j)+r}, v{vM+j}")
    exps, cvts = sm_ops(0)
    for x in exps: A(x)
    A("s_nop 0")
    for x in cvts: A(x)
    A("s_waitcnt lgkmcnt(0)")
    A("s_nop 1")
    for j in range(3): A(f"{MF} {A4(aL(j))}, {A4(aONE)}, {V4(vP(0,j))}, {A4(aL(j))}")
    for b in range(8):
        for j in range(3):
            A(f"{MF} {V4(vO(j,b))}, {A4(aF(b))}, {V4(vP(0,j))}, {V4(vO(j,b))}")
    A(f"s_add_u32 s{sK}, s{sK}, 8192")
    A(f"s_cmp_lt_u32 s{sK}, 262144")
    A("s_cbranch_scc1 L_slow_loop")
    slowl1 = len(L)
    A("s_nop 7")
    for j in range(3): A(f"v_accvgpr_read_b32 v{t+j}, a{aL(j)}")
    A("s_branch L_epi")
    errs = check_hazards(pro + loop + loop + tail, "fast")
    errs += check_hazards(L[tail0:epi0] + L[slow0:slowl1] + L[slowl0:] + epi, "slow")
    if errs:
        raise RuntimeError("\n".join(errs))
    A('.section .rodata,"a"')
    A(".p2align 6")
    A(f".amdhsa_kernel {NAME}")
    A("  .amdhsa_next_free_vgpr 304")
    A("  .amdhsa_next_free_sgpr 102")
    A("  .amdhsa_accum_offset 256")
    A("  .amdhsa_group_segment_fixed_size 0")
    A("  .amdhsa_kernarg_size 48")
    A("  .amdhsa_user_sgpr_count 2")
    A("  .amdhsa_user_sgpr_kernarg_segment_ptr 1")
    A("  .amdhsa_system_sgpr_workgroup_id_x 1")
    A("  .amdhsa_float_denorm_mode_32 3")
    A(".end_amdhsa_kernel")
    out = []
    for l in L:
        out.append(l if (l.endswith(":") or l.startswith((".", ";", " "))) else "    " + l)
    return "\n".join(out) + "\n"

if __name__ == "__main__":
    kw = {}
    for a in sys.argv[1:]:
        k, v = a.split("=", 1)
        try: v = eval(v)
        except Exception: pass
        kw[k] = v
    sys.stdout.write(gen(Cfg(**kw)))
```

```python
import math, struct, sys
from asmlib import Ins, check_hazards

NAME = "standalone__mha_softmax__near_ridge_kernel"
BS = 1056
TILE = 8 * BS
R = 4
KRING = 0
VRING = R * TILE
PRIV = 2 * R * TILE
PRIVSZ = 2 * TILE
LDS_BYTES = PRIV + 4 * PRIVSZ
ESTR = 272
NSTEP = 32

def f2u(x): return struct.unpack("<I", struct.pack("<f", x))[0]
C_SCALE = f2u(math.log2(math.e) / math.sqrt(128.0))
L_MAX = f2u(2.0 ** 24)

vDMA, vKRD, vVRD, vQDMA, vQRD, vPVRD, vEW, vER, vOST = 1, 2, 3, 4, 5, 6, 7, 8, 9
vT = 10
def vO(j, b): return 28 + (j * 8 + b) * 4
def vS(par, kb, j): return 124 + par * 24 + (kb * 3 + j) * 4
def vP(par, j): return 172 + par * 12 + j * 4
def vNM(j): return 196 + j * 4
def vQ(j, s): return 208 + (j * 4 + s) * 4
NF = 8
def aF(i): return (i % NF) * 4
aONE = 32
def aL(j): return 36 + j * 4
def V4(r): return f"v[{r}:{r+3}]"
def V2(r): return f"v[{r}:{r+1}]"
def A4(r): return f"a[{r}:{r+3}]"
def A2(r): return f"a[{r}:{r+1}]"
sW, sWL, sPRIV, sK, sV, sCNT, sTHR = 3, 28, 29, 30, 31, 32, 36
SRD_Q, SRD_K, SRD_V, SRD_O, SRD_WS = "s[12:15]", "s[16:19]", "s[20:23]", "s[24:27]", "s[40:43]"
MF = "v_mfma_f32_16x16x32_bf16"

class Cfg:
    lead = 4
    pf = 4
    ldflags = "nt"
    qflags = None
    stflags = ""
    dma_groups = (0, 2, 4, 6)
    pro_depth = 0
    stamps = False
    force_slow = False
    pad = 0
    enc = None
    encwg = None
    trace = False
    nodma = False
    nomfma = False
    novalu = False
    nods = False
    def __init__(self, **kw):
        for k, v in kw.items():
            assert hasattr(Cfg, k), k
            setattr(self, k, v)
        if self.qflags is None: self.qflags = self.ldflags

def piece(p):
    if p < 2: return ("K", 0, p)
    g, q = divmod(p - 2, 4)
    return ("K", g + 1, q) if q < 2 else ("V", g, q - 2)

def dma_ins(cfg, p):
    kind, t, h = piece(p)
    ring = KRING if kind == "K" else VRING
    m0 = f"s_add_u32 m0, s{sWL}, {ring + (t % R) * TILE + h * (BS - 1024)}"
    so = sK if kind == "K" else sV
    inc = f"s_add_u32 s{so}, s{so}, 8192" if h == 0 else None
    off = " offset:1024" if h else ""
    ld = f"buffer_load_dwordx4 v{vDMA}, {SRD_K if kind == 'K' else SRD_V}, s{so} offen{off} {cfg.ldflags} lds".replace("  ", " ")
    return m0, inc, ld

def k_read(dst, base, tslot, f):
    kb, s = divmod(f, 4)
    return [f"ds_read_b128 {A4(dst)}, v{base} offset:{tslot + kb * 4 * BS + s * 256}"]

def v_read(dst, base, tslot, b):
    o = tslot + (b >> 1) * 256 + (b & 1) * 32
    return [f"ds_read_b64_tr_b16 {A2(dst)}, v{base} offset:{o}",
            f"ds_read_b64_tr_b16 {A2(dst + 2)}, v{base} offset:{o + 4 * BS}"]

def sm_ops(par):
    exps, cvts = [], []
    for j in range(3):
        for kb in range(2):
            s = vS(par, kb, j)
            for h in range(2):
                exps += [f"v_exp_f32 v{s+2*h}, v{s+2*h}", f"v_exp_f32 v{s+2*h+1}, v{s+2*h+1}"]
                cvts.append(f"v_cvt_pk_bf16_f32 v{vP(par, j)+2*kb+h}, v{s+2*h}, v{s+2*h+1}")
    return exps, cvts

class Slot:
    def __init__(self, mfma, need=None):
        self.mfma, self.need = mfma, need
        self.scalar, self.ds, self.dma, self.valu = [], [], [], []
    def cap(self):
        return 8 - 4 * len(self.ds) - 8 * len(self.dma) - 4 * max(0, len(self.scalar) - 1) - sum(8 if "v_exp" in v else 4 for v in self.valu)

def body_slots(cfg, u):
    pf, par = cfg.pf, u & 1
    slots, gstart = [], []
    for i in range(16):
        gstart.append(len(slots))
        fr = A4(aF(i))
        for j in range(3):
            if i < pf:
                b = 8 - pf + i
                m = f"{MF} {V4(vO(j,b))}, {fr}, {V4(vP(par^1,j))}, {V4(vO(j,b))}"
            elif i < pf + 8:
                kb, s = divmod(i - pf, 4)
                d = vS(par ^ 1, kb, j)
                m = f"{MF} {V4(d)}, {fr}, {V4(vQ(j,s))}, {V4(vNM(j) if s == 0 else d)}"
            else:
                b = i - pf - 8
                m = f"{MF} {V4(vO(j,b))}, {fr}, {V4(vP(par,j))}, {V4(vO(j,b))}"
            slots.append(Slot(m, i if j == 0 else None))
        if i == pf + 8:
            for j in range(3):
                slots.append(Slot(f"{MF} {A4(aL(j))}, {A4(aONE)}, {V4(vP(par,j))}, {A4(aL(j))}"))
    for i in range(16):
        dst = aF(i + pf)
        if i < 8: rd = k_read(dst, vKRD, ((u + 1) % R) * TILE, i)
        else: rd = v_read(dst, vVRD, (u % R) * TILE, i - 8)
        slots[gstart[i]].ds = rd
    for n, g in enumerate(cfg.dma_groups):
        m0, inc, ld = dma_ins(cfg, 2 + 4 * (u + 1) + cfg.lead + n)
        slots[gstart[g]].scalar.append(m0)
        if inc: slots[gstart[g] + 1].scalar.append(inc)
        slots[gstart[g] + 1].dma.append(ld)
    return slots, gstart

def nreads(i):
    return 1 if (i % 16) < 8 else 2

def fill_sm(cfg, slots, gstart, u):
    pf, par = cfg.pf, u & 1
    head0 = gstart[pf + 8]
    order = [(s, par ^ 1) for s in range(head0, len(slots))] + [(s, par) for s in range(0, head0)]
    ops = {p: sm_ops(p) for p in (0, 1)}
    ne = nc = 0
    head_ops = []
    for s, p in order:
        sl = slots[s]
        exps, cvts = ops[p]
        ne0 = ne
        if sl.cap() >= 8 and ne < 24:
            sl.valu.append(exps[ne]); ne += 1
            if s >= head0: head_ops.append(("e", ne - 1))
        else:
            while sl.cap() >= 4 and nc < 12 and 2 * nc + 2 <= ne0:
                sl.valu.append(cvts[nc]); nc += 1
                if s >= head0: head_ops.append(("c", nc - 1))
    assert ne == 24 and nc == 12, (ne, nc)
    return head_ops

def emit_body(cfg, u, A, last_in_loop=False):
    slots, gstart = body_slots(cfg, u)
    pf = cfg.pf
    for i in range(1, 16):
        n = sum(nreads(g) for g in range(i - pf + 1, i))
        slots[gstart[i] - 1].scalar.insert(0, f"s_waitcnt lgkmcnt({n})")
    if last_in_loop:
        slots[-2].scalar.append(f"s_cmp_lt_u32 s{sCNT}, {NSTEP // R}")
        slots[gstart[13] + 1].scalar.append(f"s_add_u32 s{sCNT}, s{sCNT}, 1")
    head_ops = fill_sm(cfg, slots, gstart, u)
    n0 = sum(nreads(g) for g in range(-pf + 1, 0))
    p = cfg.pad
    while p > 0:
        A(f"s_nop {min(p, 16) - 1}"); p -= 16
    A(f"s_waitcnt vmcnt({cfg.lead}) lgkmcnt({n0})")
    A("s_barrier")
    if cfg.trace == 1:
        A("v_mov_b32 v22, s68"); A("v_mov_b32 v23, s70")
        A("ds_write_b64 v24, v[22:23]")
        A("v_add_u32 v24, 8, v24")
        A("s_memrealtime s[68:69]"); A("s_memtime s[70:71]")
    elif cfg.trace == 2:
        g = gstart[cfg.pf + 6]
        slots[g + 1].valu += ["v_mov_b32 v22, s68", "v_mov_b32 v23, s70"]
        slots[g + 2].valu += ["v_add_u32 v24, 8, v24"]
        slots[g + 4].ds += ["ds_write_b64 v24, v[22:23]"]
        slots[g + 4].scalar += ["s_memrealtime s[68:69]"]
        slots[g + 5].scalar += ["s_memtime s[70:71]"]
    for sl in slots:
        A("s_nop 0" if cfg.nomfma else sl.mfma)
        for x in sl.scalar + ([] if cfg.nods else sl.ds) + ([] if cfg.nodma else sl.dma) + ([] if cfg.novalu else sl.valu): A(x)
    return head_ops

def rowmax(A, par, dst):
    for j in range(3):
        s0, s1 = vS(par, 0, j), vS(par, 1, j)
        A(f"v_max3_f32 v{dst+j}, v{s0}, v{s0+1}, v{s0+2}")
        A(f"v_max3_f32 v{dst+j}, v{dst+j}, v{s0+3}, v{s1}")
        A(f"v_max3_f32 v{dst+j}, v{dst+j}, v{s1+1}, v{s1+2}")
        A(f"v_max_f32 v{dst+j}, v{dst+j}, v{s1+3}")
    for op in ("v_permlane16_swap_b32", "v_permlane32_swap_b32"):
        for j in range(3): A(f"v_mov_b32 v{dst+3+j}, v{dst+j}")
        A("s_nop 1")
        for j in range(3): A(f"{op} v{dst+j}, v{dst+3+j}")
        for j in range(3): A(f"v_max_f32 v{dst+j}, v{dst+j}, v{dst+3+j}")

def stamp(cfg, A, n):
    if cfg.enc is not None and n in (0, cfg.enc):
        A(f"s_memrealtime s[{50+2*n}:{51+2*n}]")
    if cfg.stamps:
        A(f"s_memrealtime s[{50+2*n}:{51+2*n}]")
        if n == 2: A("s_memtime s[64:65]")
        if n == 3: A("s_memtime s[66:67]")

def gen(cfg):
    L = []
    A = L.append
    pf = cfg.pf
    A(f"; @launch grid=(256,1,1) block=(256,1,1) lds={LDS_BYTES}")
    A('.amdgcn_target "amdgcn-amd-amdhsa--gfx950"')
    A(".text")
    A(f".globl {NAME}")
    A(".p2align 8")
    A(f".type {NAME},@function")
    A(f"{NAME}:")
    code0 = len(L)
    stamp(cfg, A, 0)
    A("s_cmp_ge_u32 s2, 256")
    A("s_cbranch_scc1 L_end")
    A("s_load_dwordx8 s[4:11], s[0:1], 0")
    if cfg.stamps: A("s_load_dwordx2 s[40:41], s[0:1], 40")
    t = vT
    A(f"v_lshrrev_b32 v{t}, 6, v0")
    A(f"v_and_b32 v{t+1}, 63, v0")
    A(f"v_readfirstlane_b32 s{sW}, v{t}")
    A(f"v_and_b32 v{t+2}, 3, v0")
    A(f"v_bfe_u32 v{t+3}, v0, 2, 2")
    A(f"v_lshrrev_b32 v{t+4}, 4, v{t+1}")
    A(f"v_lshlrev_b32 v{vQDMA}, 4, v{t+2}")
    A(f"v_lshl_add_u32 v{vQDMA}, v{t+3}, 8, v{vQDMA}")
    A(f"v_lshl_add_u32 v{vQDMA}, v{t+4}, 6, v{vQDMA}")
    A(f"v_lshl_add_u32 v{vDMA}, v{t}, 11, v{vQDMA}")
    A("s_mul_i32 s38, s2, 49152")
    A("s_lshl_b32 s39, s2, 18")
    A(f"s_mul_i32 s{sWL}, s{sW}, {2 * BS}")
    A(f"s_mul_i32 s{sPRIV}, s{sW}, {PRIVSZ}")
    A(f"s_mul_i32 s37, s{sW}, 12288")
    A(f"s_add_u32 s{sPRIV}, s{sPRIV}, {PRIV}")
    A("s_mov_b32 s14, 49152"); A("s_mov_b32 s15, 0x20000")
    A("s_mov_b32 s18, 262144"); A("s_mov_b32 s19, 0x20000")
    A("s_mov_b32 s22, 262144"); A("s_mov_b32 s23, 0x20000")
    A("s_mov_b32 s26, 49152"); A("s_mov_b32 s27, 0x20000")
    A(f"s_mov_b32 s{sK}, -8192"); A(f"s_mov_b32 s{sV}, -8192")
    A(f"s_mov_b32 m0, s{sPRIV}")
    A("s_waitcnt lgkmcnt(0)")
    if cfg.enc == 6: stamp(cfg, A, 6)
    A("s_add_u32 s12, s4, s38"); A("s_addc_u32 s13, s5, 0")
    nissued = 0
    def pace():
        if cfg.pro_depth and nissued > cfg.pro_depth: A(f"s_waitcnt vmcnt({cfg.pro_depth})")
    extra = ["s_add_u32 s16, s6, s39", "s_addc_u32 s17, s7, 0", "s_add_u32 s20, s8, s39", "s_addc_u32 s21, s9, 0",
             "s_add_u32 s24, s10, s38", "s_addc_u32 s25, s11, 0"]
    for i in range(12):
        hi, lo = divmod(i, 4)
        if i:
            A(f"s_add_u32 m0, s{sPRIV}, {i * BS - lo * 1024}")
            if lo == 0: A("s_add_u32 s37, s37, 4096")
            elif extra: A(extra.pop(0)); A(extra.pop(0))
            else: A("s_nop 0")
        off = f" offset:{lo * 1024}" if lo else ""
        A(f"buffer_load_dwordx4 v{vQDMA}, {SRD_Q}, s37 offen{off} {cfg.qflags} lds".replace("  ", " "))
        nissued += 1; pace()
    npro = 2 + 4 + cfg.lead
    for p in range(npro):
        m0, inc, ld = dma_ins(cfg, p)
        A(m0); A(inc if inc else "s_nop 0"); A(ld)
        nissued += 1; pace()
    A(f"v_mul_u32_u24 v{vKRD}, {BS}, v{t+3}")
    A(f"v_lshl_add_u32 v{vKRD}, v{t+2}, 6, v{vKRD}")
    A(f"v_lshl_add_u32 v{vKRD}, v{t+4}, 4, v{vKRD}")
    A(f"v_add_u32 v{vQRD}, s{sPRIV}, v{vKRD}")
    if KRING: A(f"v_add_u32 v{vKRD}, {KRING}, v{vKRD}")
    A(f"v_mul_u32_u24 v{vVRD}, {BS}, v{t+4}")
    A(f"v_lshl_add_u32 v{vVRD}, v{t+3}, 6, v{vVRD}")
    A(f"v_lshl_add_u32 v{vVRD}, v{t+2}, 3, v{vVRD}")
    A(f"v_add_u32 v{vPVRD}, s{sPRIV}, v{vVRD}")
    A(f"v_add_u32 v{vVRD}, {VRING}, v{vVRD}")
    A(f"v_and_b32 v{t+5}, 15, v0")
    A(f"v_mul_u32_u24 v{vEW}, {ESTR}, v{t+5}")
    A(f"v_lshl_add_u32 v{vEW}, v{t+4}, 3, v{vEW}")
    A(f"v_add_u32 v{vEW}, s{sPRIV}, v{vEW}")
    A(f"v_mul_u32_u24 v{vER}, {ESTR}, v{t+4}")
    A(f"v_lshl_add_u32 v{vER}, v{t+5}, 4, v{vER}")
    A(f"v_add_u32 v{vER}, s{sPRIV}, v{vER}")
    A(f"v_mul_u32_u24 v{vOST}, 12288, v{t}")
    A(f"v_lshl_add_u32 v{vOST}, v{t+1}, 4, v{vOST}")
    A(f"s_mov_b32 s34, {C_SCALE:#x}"); A(f"s_mov_b32 s35, {C_SCALE:#x}")
    A(f"s_mov_b32 s{sTHR}, {L_MAX:#x}")
    A(f"s_mov_b32 s{sCNT}, 0")
    A("s_mov_b32 s33, 0x3f803f80")
    for r in range(0, 96, 2): A(f"v_mov_b64 {V2(vO(0,0)+r)}, 0")
    for r in range(0, 12, 2): A(f"v_mov_b64 {V2(vP(1,0)+r)}, 0")
    for r in range(4): A(f"v_accvgpr_write_b32 a{aONE+r}, s33")
    for r in range(12): A(f"v_accvgpr_write_b32 a{aL(0)+r}, 0")
    for j in range(3):
        A(f"s_waitcnt vmcnt({npro + 8 - 4 * j})")
        for s in range(4):
            A(f"ds_read_b128 {V4(vQ(j,s))}, v{vQRD} offset:{j * 4 * BS + s * 256}")
        for s in range(4):
            A(f"s_waitcnt lgkmcnt({3 - s})")
            q = vQ(j, s)
            for r in range(4):
                A(f"v_lshlrev_b32 v{t+2*r}, 16, v{q+r}")
                A(f"v_and_b32 v{t+2*r+1}, 0xffff0000, v{q+r}")
            for r in range(4): A(f"v_pk_mul_f32 {V2(t+2*r)}, {V2(t+2*r)}, s[34:35]")
            for r in range(4): A(f"v_cvt_pk_bf16_f32 v{q+r}, v{t+2*r}, v{t+2*r+1}")
    stamp(cfg, A, 1)
    A(f"s_waitcnt vmcnt({npro - 2})")
    A("s_barrier")
    for f in range(8):
        for x in k_read(aF(f), vKRD, 0, f): A(x)
    for f in range(8):
        kb, s = divmod(f, 4)
        A(f"s_waitcnt lgkmcnt({7 - f})")
        for j in range(3):
            d = vS(0, kb, j)
            A(f"{MF} {V4(d)}, {A4(aF(f))}, {V4(vQ(j,s))}, {'0' if s == 0 else V4(d)}")
    for r in range(4 * pf): A(f"v_accvgpr_write_b32 a{aF(0)+r}, 0")
    rowmax(A, 0, t)
    for j in range(3):
        for r in range(4): A(f"v_sub_f32 v{vNM(j)+r}, 0, v{t+j}")
    for kb in range(2):
        for j in range(3):
            for r in range(4): A(f"v_sub_f32 v{vS(0,kb,j)+r}, v{vS(0,kb,j)+r}, v{t+j}")
    loop = []
    head_ops = None
    for u in range(R):
        head_ops = emit_body(cfg, u, loop.append, last_in_loop=(u == R - 1))
    exps, cvts = sm_ops(0)
    for k, n in sorted(head_ops, key=lambda x: x[0] != "e"):
        if k == "c": A("s_nop 0")
        A(exps[n] if k == "e" else cvts[n])
    stamp(cfg, A, 2)
    if cfg.trace:
        A(f"s_add_u32 s37, s{sPRIV}, {13312 - (8 if cfg.trace == 2 else 0)}")
        A("v_mov_b32 v24, s37")
        A("s_memrealtime s[68:69]"); A("s_memtime s[70:71]")
        A("s_waitcnt lgkmcnt(0)")
    pro = L[code0:]
    A(".p2align 6")
    A("L_loop:")
    L.extend(loop)
    A("s_cbranch_scc1 L_loop")
    tail0 = len(L)
    stamp(cfg, A, 3)
    for i in range(pf):
        A(f"s_waitcnt lgkmcnt({2 * (pf - 1 - i)})")
        b = 8 - pf + i
        for j in range(3):
            A(f"{MF} {V4(vO(j,b))}, {A4(aF(i))}, {V4(vP(1,j))}, {V4(vO(j,b))}")
    for j in range(3): A(f"v_accvgpr_read_b32 v{t+j}, a{aL(j)}")
    A(f"v_add_f32 v{t+4}, v{t}, v{t+1}")
    A(f"v_add_f32 v{t+4}, v{t+4}, v{t+2}")
    A(f"v_cmp_ngt_f32 vcc, s{sTHR}, v{t+4}")
    A("s_nop 4")
    A("s_branch L_slow" if cfg.force_slow else "s_cbranch_vccnz L_slow")
    A("L_epi:")
    epi0 = len(L)
    for j in range(3): A(f"v_rcp_f32 v{t+2*j+4}, v{t+j}")
    A("s_nop 0")
    for j in range(3):
        rl = t + 2 * j + 4
        for b in range(8):
            o = vO(j, b)
            A(f"v_pk_mul_f32 {V2(o)}, {V2(o)}, {V2(rl)} op_sel_hi:[1,0]")
            A(f"v_pk_mul_f32 {V2(o+2)}, {V2(o+2)}, {V2(rl)} op_sel_hi:[1,0]")
            A(f"v_cvt_pk_bf16_f32 v{o}, v{o}, v{o+1}")
            A(f"v_cvt_pk_bf16_f32 v{o+1}, v{o+2}, v{o+3}")
            A(f"ds_write_b64 v{vEW}, {V2(o)} offset:{j * 16 * ESTR + b * 32}")
        A("s_waitcnt lgkmcnt(0)")
        for i in range(4):
            A(f"ds_read_b128 {V4(vS(0,0,0) + (j*4+i)*4)}, v{vER} offset:{(j * 16 + i * 4) * ESTR}")
        A(f"s_mov_b32 s37, {j * 4096}")
        for i in range(4):
            A(f"s_waitcnt lgkmcnt({3 - i})")
            off = f" offset:{i * 1024}" if i else ""
            A(f"buffer_store_dwordx4 {V4(vS(0,0,0) + (j*4+i)*4)}, v{vOST}, {SRD_O}, s37 offen{off} {cfg.stflags}".rstrip())
    if cfg.stamps:
        stamp(cfg, A, 4)
        A("s_waitcnt vmcnt(0)")
        stamp(cfg, A, 5)
        A("s_mov_b32 s42, 0x100000"); A("s_mov_b32 s43, 0x20000")
        A("s_getreg_b32 s62, hwreg(HW_REG_XCC_ID)")
        A("s_waitcnt lgkmcnt(0)")
        for n in range(6): A(f"v_mov_b32 v{12+n}, s{50+2*n}")
        A("s_sub_u32 s66, s66, s64"); A("v_mov_b32 v18, s62"); A("v_mov_b32 v19, s66")
        A(f"s_lshl_b32 s37, s2, 2"); A(f"s_add_u32 s37, s37, s{sW}"); A("s_lshl_b32 s37, s37, 5")
        A("v_mov_b32 v10, s37")
        A(f"buffer_store_dwordx4 v[12:15], v10, {SRD_WS}, 0 offen")
        A(f"buffer_store_dwordx4 v[16:19], v10, {SRD_WS}, 0 offen offset:16")
        if cfg.trace:
            A("v_mov_b32 v22, s68"); A("v_mov_b32 v23, s70")
            A("ds_write_b64 v24, v[22:23]" + (" offset:8" if cfg.trace == 2 else ""))
            A("v_and_b32 v25, 63, v0")
            A("v_lshlrev_b32 v25, 3, v25")
            A(f"s_add_u32 s38, s{sPRIV}, 13312")
            A("v_add_u32 v24, s38, v25")
            A("s_waitcnt lgkmcnt(0)")
            A("ds_read_b64 v[22:23], v24")
            A("s_lshl_b32 s37, s37, 4"); A("s_add_u32 s37, s37, 0x10000")
            A("s_waitcnt lgkmcnt(0)")
            A(f"buffer_store_dwordx2 v[22:23], v25, {SRD_WS}, s37 offen")
    if cfg.enc is not None:
        stamp(cfg, A, 4)
        A("s_waitcnt vmcnt(0)")
        stamp(cfg, A, 5)
        A("s_waitcnt lgkmcnt(0)")
        if cfg.encwg is not None:
            A(f"s_cmp_lg_u32 s2, {cfg.encwg}")
            A("s_cbranch_scc1 L_end")
        A(f"s_sub_u32 s38, s{50+2*cfg.enc}, s50")
        A("s_mul_i32 s38, s38, 10")
        A("s_add_u32 s38, s38, 10000")
        A("L_spin:")
        A("s_sleep 4")
        A("s_memrealtime s[72:73]")
        A("s_waitcnt lgkmcnt(0)")
        A("s_sub_u32 s72, s72, s50")
        A("s_cmp_lt_u32 s72, s38")
        A("s_cbranch_scc1 L_spin")
    A("L_end:")
    A("s_endpgm")
    tail = L[tail0:]
    epi = L[epi0:]
    slow0 = len(L)
    A("L_slow:")
    A("s_waitcnt vmcnt(0)")
    A("s_nop 7")
    vM, vAL = vNM(0), vNM(0) + 4
    for r in range(0, 96, 2): A(f"v_mov_b64 {V2(vO(0,0)+r)}, 0")
    for r in range(12): A(f"v_accvgpr_write_b32 a{aL(0)+r}, 0")
    for j in range(3): A(f"v_mov_b32 v{vM+j}, 0xff7fffff")
    A(f"s_mov_b32 s{sK}, 0")
    slowl0 = len(L)
    A("L_slow_loop:")
    for srd, base in ((SRD_K, 0), (SRD_V, TILE)):
        for a in range(8):
            hi, lo = divmod(a, 4)
            A(f"s_add_u32 m0, s{sPRIV}, {base + a * BS - lo * 1024}")
            A(f"s_add_u32 s37, s{sK}, {hi * 4096}")
            off = f" offset:{lo * 1024}" if lo else ""
            A(f"buffer_load_dwordx4 v{vQDMA}, {srd}, s37 offen{off} lds")
    A("s_waitcnt vmcnt(0)")
    for f in range(8):
        for x in k_read(aF(f), vQRD, 0, f): A(x)
    A("s_waitcnt lgkmcnt(0)")
    for f in range(8):
        kb, s = divmod(f, 4)
        for j in range(3):
            d = vS(0, kb, j)
            A(f"{MF} {V4(d)}, {A4(aF(f))}, {V4(vQ(j,s))}, {'0' if s == 0 else V4(d)}")
    A("s_nop 7")
    for b in range(8):
        for x in v_read(aF(b), vPVRD, TILE, b): A(x)
    rowmax(A, 0, t)
    for j in range(3): A(f"v_max_f32 v{t+j}, v{t+j}, v{vM+j}")
    for j in range(3): A(f"v_sub_f32 v{vAL+j}, v{vM+j}, v{t+j}")
    for j in range(3): A(f"v_exp_f32 v{vAL+j}, v{vAL+j}")
    for j in range(3): A(f"v_mov_b32 v{vM+j}, v{t+j}")
    for j in range(3):
        for r in range(32): A(f"v_mul_f32 v{vO(j,0)+r}, v{vO(j,0)+r}, v{vAL+j}")
        for r in range(4):
            A(f"v_accvgpr_read_b32 v{t+6}, a{aL(j)+r}")
            A(f"v_mul_f32 v{t+6}, v{t+6}, v{vAL+j}")
            A(f"v_accvgpr_write_b32 a{aL(j)+r}, v{t+6}")
    for kb in range(2):
        for j in range(3):
            for r in range(4): A(f"v_sub_f32 v{vS(0,kb,j)+r}, v{vS(0,kb,j)+r}, v{vM+j}")
    exps, cvts = sm_ops(0)
    for x in exps: A(x)
    A("s_nop 0")
    for x in cvts: A(x)
    A("s_waitcnt lgkmcnt(0)")
    A("s_nop 1")
    for j in range(3): A(f"{MF} {A4(aL(j))}, {A4(aONE)}, {V4(vP(0,j))}, {A4(aL(j))}")
    for b in range(8):
        for j in range(3):
            A(f"{MF} {V4(vO(j,b))}, {A4(aF(b))}, {V4(vP(0,j))}, {V4(vO(j,b))}")
    A(f"s_add_u32 s{sK}, s{sK}, 8192")
    A(f"s_cmp_lt_u32 s{sK}, 262144")
    A("s_cbranch_scc1 L_slow_loop")
    slowl1 = len(L)
    A("s_nop 7")
    for j in range(3): A(f"v_accvgpr_read_b32 v{t+j}, a{aL(j)}")
    A("s_branch L_epi")
    errs = check_hazards(pro + loop + loop + tail, "fast")
    errs += check_hazards(L[tail0:epi0] + L[slow0:slowl1] + L[slowl0:] + epi, "slow")
    if errs:
        raise RuntimeError("\n".join(errs))
    A('.section .rodata,"a"')
    A(".p2align 6")
    A(f".amdhsa_kernel {NAME}")
    A("  .amdhsa_next_free_vgpr 304")
    A("  .amdhsa_next_free_sgpr 102")
    A("  .amdhsa_accum_offset 256")
    A("  .amdhsa_group_segment_fixed_size 0")
    A("  .amdhsa_kernarg_size 48")
    A("  .amdhsa_user_sgpr_count 2")
    A("  .amdhsa_user_sgpr_kernarg_segment_ptr 1")
    A("  .amdhsa_system_sgpr_workgroup_id_x 1")
    A("  .amdhsa_float_denorm_mode_32 3")
    A(".end_amdhsa_kernel")
    out = []
    for l in L:
        out.append(l if (l.endswith(":") or l.startswith((".", ";", " "))) else "    " + l)
    return "\n".join(out) + "\n"

if __name__ == "__main__":
    kw = {}
    for a in sys.argv[1:]:
        k, v = a.split("=", 1)
        try: v = eval(v)
        except Exception: pass
        kw[k] = v
    sys.stdout.write(gen(Cfg(**kw)))
```

```python
import math, struct, sys
from asmlib import Ins, check_hazards

NAME = "standalone__mha_softmax__near_ridge_kernel"
BS = 1056
TILE = 16 * BS
PRIVSZ = TILE
ESTR = 1280
LOFF = 12 * ESTR

def f2u(x): return struct.unpack("<I", struct.pack("<f", x))[0]
C_SCALE = f2u(math.log2(math.e) / math.sqrt(128.0))
L_MAX = f2u(2.0 ** 40)

vDMA, vKB, vVB, vRD = 0, 1, 2, 3
def vO(j, b): return 4 + (j * 8 + b) * 4
def vS(kb, j): return 100 + (kb * 3 + j) * 4
def vP(par, j, k): return 148 + par * 24 + (j * 2 + k) * 4
def vNM(j): return 196 + j * 4
def vQ(j, s): return 208 + (j * 4 + s) * 4
def aF(st, i): return st * 16 + i * 4
aONE = 64
def aL(j): return 68 + j * 4
aADDR = 80
NAGPR = 88
def V4(r): return f"v[{r}:{r+3}]"
def V2(r): return f"v[{r}:{r+1}]"
def A4(r): return f"a[{r}:{r+3}]"
def A2(r): return f"a[{r}:{r+1}]"
sW, sWR, sPRIV, sK, sV, sRD, sTHR, sWEND, sW0, sQ = 3, 28, 29, 30, 31, 32, 36, 44, 45, 37
sALT = 46
SRD_Q, SRD_K, SRD_V, SRD_O, SRD_WS = "s[12:15]", "s[16:19]", "s[20:23]", "s[24:27]", "s[40:43]"
MF = "v_mfma_f32_16x16x32_bf16"

class Cfg:
    lead = 4
    ns = 5
    ldflags = "nt"
    stflags = "nt"
    dma_slots = (1, 13, 25, 37)
    rd_slots = (0, 2, 4, 6)
    early = ()
    stamps = False
    st1 = 0
    force_slow = False
    pad = 0
    nodma = False
    hold = None
    ramp = None
    def __init__(self, **kw):
        for k, v in kw.items():
            assert hasattr(Cfg, k), k
            setattr(self, k, v)
        assert self.ns >= 3 + (self.lead + 3) // 4
        self.priv = self.ns * TILE
        self.lds = self.priv + 4 * PRIVSZ
        assert self.lds <= 163840

def group(g):
    if g == 0: return "K"
    if g <= 3: return "Q"
    return "K" if (g - 4) % 2 == 0 else "V"

def dma_piece(cfg, p):
    g, i = divmod(p, 4)
    kind = group(g)
    pre = []
    if kind == "Q":
        n = (g - 1) * 4 + i
        pre.append([f"s_add_u32 m0, s{sPRIV}, {n * BS}"])
        pre.append([f"s_add_u32 s{sQ}, s{sQ}, 1024"])
        return pre, f"buffer_load_dwordx4 v{vDMA}, {SRD_Q}, s{sQ} offen {cfg.ldflags} lds".replace("  ", " ")
    so = sK if kind == "K" else sV
    if i == 0:
        pre.append([f"s_add_u32 s{sWR}, s{sWR}, {TILE}"])
        pre.append([f"s_cmp_eq_u32 s{sWR}, s{sWEND}", f"s_cselect_b32 s{sWR}, s{sW0}, s{sWR}"])
    pre.append([f"s_add_u32 m0, s{sWR}, {4 * i * BS}"] if i else [f"s_mov_b32 m0, s{sWR}"])
    pre.append([f"s_add_u32 s{so}, s{so}, 4096"])
    if kind == "K" and i == 0:
        pre.append([f"s_cmp_eq_u32 s{sK}, 262144", f"s_cselect_b64 s[16:17], s[{sALT}:{sALT+1}], s[16:17]"])
    srd = SRD_K if kind == "K" else SRD_V
    return pre, f"buffer_load_dwordx4 v{vDMA}, {srd}, s{so} offen {cfg.ldflags} lds".replace("  ", " ")

def k_read(dst, base, kb, s, off=0):
    return f"ds_read_b128 {A4(dst)}, v{base} offset:{off + kb * 4 * BS + s * 256}"

def v_read(dst, base, b, k, off=0):
    o = off + 8 * k * BS + (b >> 1) * 256 + (b & 1) * 32
    return [f"ds_read_b64_tr_b16 {A2(dst)}, v{base} offset:{o}",
            f"ds_read_b64_tr_b16 {A2(dst + 2)}, v{base} offset:{o + 4 * BS}"]

def qk_order(kb):
    js = [0, 1, 2] if kb % 2 == 0 else [2, 1, 0]
    out = []
    for n, j in enumerate(js):
        up = (kb * 3 + n) % 2 == 0
        out += [(j, s) for s in ([0, 1, 2, 3] if up else [3, 2, 1, 0])]
    return out

def pv_order(g):
    out = []
    for bb in range(2):
        b = 2 * g + bb
        js = [0, 1, 2] if b % 2 == 0 else [2, 1, 0]
        for n, j in enumerate(js):
            up = (b * 3 + n) % 2 == 0
            out += [(b, j, k) for k in ([0, 1] if up else [1, 0])]
    return out

class Slot:
    def __init__(self, mfma, frag=None):
        self.mfma, self.frag = mfma, frag
        self.pre, self.scalar, self.ds, self.dma, self.valu = [], [], [], [], []
        self.dsfrag = []
    def cap(self):
        return 8 - 4 * len(self.ds) - 8 * len(self.dma) - 4 * max(0, len(self.scalar) - 1) - sum(8 if "v_exp" in v else 4 for v in self.valu)

def qk_group(kb, st):
    sl, seen = [], set()
    for j, s in qk_order(kb):
        d = vS(kb, j)
        c = V4(d) if j in seen else V4(vNM(j))
        seen.add(j)
        sl.append(Slot(f"{MF} {V4(d)}, {A4(aF(st, s))}, {V4(vQ(j, s))}, {c}", (st, s)))
    return sl

def pv_group(g, st, par):
    return [Slot(f"{MF} {V4(vO(j, b))}, {V4(vP(par, j, k))}, {A4(aF(st, (b & 1) * 2 + k))}, {V4(vO(j, b))}", (st, (b & 1) * 2 + k))
            for b, j, k in pv_order(g)]

def sum_group(par):
    return [Slot(f"{MF} {A4(aL(j))}, {A4(aONE)}, {V4(vP(par, j, k))}, {A4(aL(j))}") for j in range(3) for k in range(2)]

def first_use(slots):
    out = []
    for s in slots:
        if s.frag not in out: out.append(s.frag)
    return out

def k_reads_for(kb, st):
    return [([k_read(aF(st, fr[1]), vRD, kb, fr[1])], fr) for fr in first_use(qk_group(kb, st))]

def v_reads_for(g, st):
    return [(v_read(aF(st, fr[1]), vRD, 2 * g + (fr[1] >> 1), fr[1] & 1), fr) for fr in first_use(pv_group(g, st, 0))]

def sm_ops(par):
    exps, cvts = [], []
    for kb in range(4):
        js = [0, 1, 2] if kb % 2 == 0 else [2, 1, 0]
        for j in js:
            s = vS(kb, j)
            for h in range(2):
                exps += [(f"v_exp_f32 v{s+2*h}, v{s+2*h}", kb, j), (f"v_exp_f32 v{s+2*h+1}, v{s+2*h+1}", kb, j)]
                cvts.append((f"v_cvt_pk_bf16_f32 v{vP(par, j, kb >> 1) + 2 * (kb & 1) + h}, v{s+2*h}, v{s+2*h+1}", kb, j))
    return exps, cvts

def ring_advance(cfg, base):
    return ([[f"s_add_u32 s{sRD}, s{sRD}, {TILE}"], [f"s_cmp_eq_u32 s{sRD}, {cfg.ns * TILE}", f"s_cselect_b32 s{sRD}, 0, s{sRD}"]],
            f"v_add_u32 v{vRD}, s{sRD}, v{base}")

def build_step(cfg, par):
    groups = [pv_group(3, 1, par ^ 1), qk_group(0, 0), qk_group(1, 1), qk_group(2, 0), qk_group(3, 1),
              sum_group(par), pv_group(0, 0, par), pv_group(1, 1, par), pv_group(2, 0, par)]
    reads = [k_reads_for(0, 0), k_reads_for(1, 1), k_reads_for(2, 0), k_reads_for(3, 1), v_reads_for(0, 0),
             [], v_reads_for(1, 1), v_reads_for(2, 0), v_reads_for(3, 1)]
    slots, gs = [], []
    for g, rd in zip(groups, reads):
        gs.append(len(slots))
        for pos, (ins, fr) in zip(cfg.rd_slots, rd):
            g[pos].ds += ins
            g[pos].dsfrag += [fr] * len(ins)
        slots += g
    n = len(slots)
    issued = []
    done = -1
    waits = {}
    for rep in range(2):
        for i, s in enumerate(slots):
            if s.frag is not None:
                need = max((q for q, fr in enumerate(issued) if fr == s.frag), default=-1)
                if need > done:
                    nxt = slots[(i + 1) % n].frag
                    need = max(need, max((q for q, fr in enumerate(issued) if fr == nxt), default=-1)) if nxt else need
                    prev = slots[i - 1]
                    total = len(issued) - len(prev.ds)
                    if i in (gs[0], gs[4]): total = len(issued)
                    assert need < total
                    if rep == 1: waits[i] = total - 1 - need
                    done = need
            issued += s.dsfrag
    for i, c in waits.items():
        if i not in (gs[0], gs[4]):
            slots[i - 1].scalar.append(f"s_waitcnt lgkmcnt({c})")
    for i in (gs[0], gs[4]):
        p = cfg.pad
        while p > 0:
            slots[i].pre.append(f"s_nop {min(p, 16) - 1}"); p -= 16
        if cfg.ramp:
            lab = f"L_ramp_{par}_{i}"
            slots[i].pre += ["s_cselect_b32 s75, 1, 0", "s_mov_b32 s74, s72", f"{lab}:", "s_sub_i32 s74, s74, 1", "s_cmp_gt_i32 s74, 0", f"s_cbranch_scc1 {lab}",
                             f"s_sub_i32 s72, s72, {cfg.ramp[1]}", f"s_max_i32 s72, s72, {cfg.ramp[2]}", "s_cmp_lg_u32 s75, 0"]
        if cfg.hold:
            lab = f"L_hold_{par}_{i}"
            slots[i].pre += ["s_cselect_b32 s75, 1, 0", "s_sub_i32 s72, s72, 1", "s_cmp_lt_i32 s72, 0", f"s_cbranch_scc1 {lab}_x", f"s_mov_b32 s74, {cfg.hold[0]}",
                             f"{lab}:", "s_sub_i32 s74, s74, 1", "s_cmp_gt_i32 s74, 0", f"s_cbranch_scc1 {lab}", f"{lab}_x:", "s_cmp_lg_u32 s75, 0"]
        lg = f" lgkmcnt({waits[i]})" if i in waits else ""
        slots[i].pre += [f"@early {(par ^ 0) * 2 + (0 if i == gs[0] else 1)}", f"s_waitcnt vmcnt({cfg.lead}){lg}", "s_barrier"]
    for ph, start in enumerate((gs[0], gs[4])):
        for m, off in enumerate(cfg.dma_slots):
            pre, ld = dma_piece(cfg, 4 * (4 + ph + 1) + cfg.lead + m + 8)
            i = start + off
            assert not slots[i].ds and not slots[i].dma, (i, off)
            slots[i].dma.append(ld)
            slots[i].dmapre = pre
    dmas = [i for i, s in enumerate(slots) if s.dma]
    gaps = []
    for q, i in enumerate(dmas):
        prev = dmas[q - 1] - (n if q == 0 else 0)
        gaps.append([prev + 1, i, list(slots[i].dmapre)])
    lastrd = {gs[4]: gs[3] + cfg.rd_slots[-1], n: gs[8] + cfg.rd_slots[-1]}
    for start, base, lo in ((gs[4], vVB, 0), (n, vKB, gs[4])):
        runs, va = ring_advance(cfg, base)
        at = max(i for i in range(lastrd[start] + 1, start) if slots[i].cap() >= 4 and i < start - 1)
        slots[at].valu.append(va)
        def room(g):
            return sum(1 for x in range(g[0], g[1] + 1) if not slots[x % n].scalar) - sum(len(r) for r in g[2])
        g = max((g for g in gaps if g[0] >= lo and g[1] < at), key=room)
        g[2] = runs + g[2]
    carried = []
    for lo, hi, runs in gaps:
        flat = [(x, len(r) == 2 and k == 1) for r in runs for k, x in enumerate(r)]
        free = [x for x in range(lo, hi + 1) if not slots[x % n].scalar and x != -1]
        if len(free) < len(flat):
            free = sorted(free + [hi] * (len(flat) - len(free)))
        tgt = free[-len(flat):]
        for k, (x, second) in enumerate(flat):
            if second and (tgt[k - 1] < 0 <= tgt[k] or tgt[k - 1] < gs[4] <= tgt[k]): tgt[k] = tgt[k - 1]
            slots[tgt[k] % n].scalar.append(x)
            if tgt[k] < 0: carried.append(x)
    chain_end, chain_start = {}, {}
    for kb in range(4):
        for q, (j, s) in enumerate(qk_order(kb)):
            chain_end[(kb, j)] = gs[1 + kb] + q
            chain_start.setdefault((kb, j), gs[1 + kb] + q)
    start = chain_end[(0, 0)] + 8
    ops = {p: sm_ops(p) for p in (0, 1)}
    ne = nc = 0
    late = []
    for t in range(start, start + n):
        i, wrapped = t % n, t >= n
        sl = slots[i]
        exps, cvts = ops[par if wrapped else par ^ 1]
        ne0 = ne
        if sl.cap() >= 8 and ne < 48 and t >= chain_end[exps[ne][1:]] + 5:
            sl.valu.append(exps[ne][0])
            if wrapped: late.append(("e", ne))
            ne += 1
        else:
            while sl.cap() >= 4 and nc < 24 and 2 * nc + 2 <= ne0:
                assert t < n + chain_start[cvts[nc][1:]] and t < n + gs[5] - 1
                sl.valu.append(cvts[nc][0])
                if wrapped: late.append(("c", nc))
                nc += 1
    assert ne == 48 and nc == 24, (ne, nc)
    return slots, gs, late, carried

def emit_slots(cfg, slots, A):
    for sl in slots:
        for x in sl.pre: A(x)
        A(sl.mfma)
        for x in sl.scalar + sl.ds + ([] if cfg.nodma else sl.dma) + sl.valu: A(x)

def xmax(A, regs, tmp):
    for op in ("v_permlane16_swap_b32", "v_permlane32_swap_b32"):
        for r, x in zip(regs, tmp): A(f"v_mov_b32 v{x}, v{r}")
        A("s_nop 1")
        for r, x in zip(regs, tmp): A(f"{op} v{r}, v{x}")
        for r, x in zip(regs, tmp): A(f"v_max_f32 v{r}, v{r}, v{x}")

def stamp(cfg, A, n):
    if cfg.stamps:
        A(f"s_memrealtime s[{50+2*n}:{51+2*n}]")
        if n == 2: A("s_memtime s[64:65]")
        if n == 3: A("s_memtime s[66:67]")

def gen(cfg):
    L = []
    A = L.append
    A(f"; @launch grid=(256,1,1) block=(256,1,1) lds={cfg.lds}")
    A('.amdgcn_target "amdgcn-amd-amdhsa--gfx950"')
    A(".text")
    A(f".globl {NAME}")
    A(".p2align 8")
    A(f".type {NAME},@function")
    A(f"{NAME}:")
    code0 = len(L)
    stamp(cfg, A, 0)
    A("s_cmp_ge_u32 s2, 256")
    A("s_cbranch_scc1 L_end")
    A("s_load_dwordx8 s[4:11], s[0:1], 0")
    if cfg.stamps: A("s_load_dwordx2 s[40:41], s[0:1], 40")
    t = vP(1, 0, 0)
    A(f"v_lshrrev_b32 v{t}, 6, v0")
    A(f"v_and_b32 v{t+1}, 63, v0")
    A(f"v_readfirstlane_b32 s{sW}, v{t}")
    A(f"v_and_b32 v{t+2}, 3, v0")
    A(f"v_bfe_u32 v{t+3}, v0, 2, 2")
    A(f"v_lshrrev_b32 v{t+4}, 4, v{t+1}")
    A(f"v_lshlrev_b32 v{vDMA}, 4, v{t+2}")
    A(f"v_lshl_add_u32 v{vDMA}, v{t+3}, 8, v{vDMA}")
    A(f"v_lshl_add_u32 v{vDMA}, v{t+4}, 6, v{vDMA}")
    A(f"v_lshl_add_u32 v{vDMA}, v{t}, 10, v{vDMA}")
    A("s_lshl_b32 s39, s2, 18")
    A("s_mul_i32 s38, s2, 49152")
    A(f"s_mul_i32 s{sW0}, s{sW}, {BS}")
    A(f"s_mul_i32 s{sPRIV}, s{sW}, {PRIVSZ}")
    A(f"s_mul_i32 s{sQ}, s{sW}, {12288 - 1024}")
    A(f"s_add_u32 s{sPRIV}, s{sPRIV}, {cfg.priv}")
    A(f"s_add_u32 s{sWEND}, s{sW0}, {cfg.ns * TILE}")
    A(f"s_sub_u32 s{sWR}, s{sW0}, {TILE}")
    A(f"s_sub_u32 s{sQ}, s{sQ}, 1024")
    A("s_mov_b32 s14, 49152"); A("s_mov_b32 s15, 0x20000")
    A(f"s_mov_b32 s18, {262144 + 16384}"); A("s_mov_b32 s19, 0x20000")
    A(f"s_mov_b32 s22, {262144 - 16384}"); A("s_mov_b32 s23, 0x20000")
    A("s_mov_b32 s26, 49152"); A("s_mov_b32 s27, 0x20000")
    A(f"s_mov_b32 s{sK}, -4096"); A(f"s_mov_b32 s{sV}, -4096")
    A("s_waitcnt lgkmcnt(0)")
    A("s_add_u32 s16, s6, s39"); A("s_addc_u32 s17, s7, 0")
    A("s_add_u32 s20, s8, s39"); A("s_addc_u32 s21, s9, 0")
    A(f"s_sub_u32 s{sALT}, s20, 16384"); A(f"s_subb_u32 s{sALT+1}, s21, 0")
    A("s_add_u32 s12, s4, s38"); A("s_addc_u32 s13, s5, 0")
    npc = [0]
    def issue(n):
        for _ in range(n):
            pre, ld = dma_piece(cfg, npc[0]); npc[0] += 1
            for r in pre:
                for x in r: A(x)
            A(ld)
    issue(4 + cfg.lead)
    A("s_add_u32 s24, s10, s38"); A("s_addc_u32 s25, s11, 0")
    x = vNM(0)
    A(f"v_mov_b32 v{x}, v{t+1}")
    vEW, vER, vOST, vLW, vLR = x + 1, x + 2, x + 3, x + 4, x + 5
    addr = [f"v_lshrrev_b32 v{x+6}, 4, v{x}", f"v_and_b32 v{x+7}, 15, v{x}", f"v_and_b32 v{x+8}, 1, v{x}",
            f"v_bfe_u32 v{x+9}, v{x}, 1, 1", f"v_bfe_u32 v{x+10}, v{x}, 2, 2",
            f"v_lshlrev_b32 v{vEW}, 4, v{x}", f"v_lshl_add_u32 v{vEW}, v{x+6}, 6, v{vEW}", f"v_add_u32 v{vEW}, s{sPRIV}, v{vEW}",
            f"v_mul_u32_u24 v{vER}, 320, v{x+6}", f"v_lshl_add_u32 v{vER}, v{x+8}, 7, v{vER}", f"v_lshl_add_u32 v{vER}, v{x+10}, 4, v{vER}",
            f"v_lshl_add_u32 v{vER}, v{x+9}, 3, v{vER}", f"v_add_u32 v{vER}, s{sPRIV}, v{vER}",
            f"v_lshl_add_u32 v{vLW}, v{x+7}, 2, s{sPRIV}", f"v_lshl_add_u32 v{vLR}, v{x+6}, 4, s{sPRIV}",
            f"v_and_b32 v{x+8}, 3, v{x}", f"v_bfe_u32 v{x+9}, v{x}, 2, 1", f"v_bfe_u32 v{x+10}, v{x}, 3, 1",
            f"v_lshlrev_b32 v{vOST}, 10, v{x+6}", f"v_lshl_add_u32 v{vOST}, v{x+8}, 5, v{vOST}",
            f"v_lshl_add_u32 v{vOST}, v{x+9}, 4, v{vOST}", f"v_lshl_add_u32 v{vOST}, v{x+10}, 7, v{vOST}"]
    for y in addr: A(y)
    for n in range(5): A(f"v_accvgpr_write_b32 a{aADDR+n}, v{x+1+n}")
    A(f"v_mul_u32_u24 v{vKB}, {BS}, v{t+3}")
    A(f"v_lshl_add_u32 v{vKB}, v{t+2}, 6, v{vKB}")
    A(f"v_lshl_add_u32 v{vKB}, v{t+4}, 4, v{vKB}")
    A(f"v_mul_u32_u24 v{vVB}, {BS}, v{t+4}")
    A(f"v_lshl_add_u32 v{vVB}, v{t+3}, 6, v{vVB}")
    A(f"v_lshl_add_u32 v{vVB}, v{t+2}, 3, v{vVB}")
    A(f"v_add_u32 v{vRD}, s{sPRIV}, v{vKB}")
    A(f"s_mov_b32 s34, {C_SCALE:#x}"); A(f"s_mov_b32 s35, {C_SCALE:#x}")
    A(f"s_mov_b32 s{sTHR}, {L_MAX:#x}")
    A(f"s_mov_b32 s{sRD}, {TILE}")
    A("s_mov_b32 s33, 0x3f803f80")
    for r in range(0, 96, 2): A(f"v_mov_b64 {V2(vO(0,0)+r)}, 0")
    for r in range(4): A(f"v_accvgpr_write_b32 a{aONE+r}, s33")
    for r in range(12): A(f"v_accvgpr_write_b32 a{aL(0)+r}, 0")
    steps = {p: build_step(cfg, p) for p in (0, 1)}
    late = steps[0][2]
    exps0, cvts0 = sm_ops(0)
    A(f"s_waitcnt vmcnt({cfg.lead})")
    A("s_barrier")
    issue(4)
    for kb in range(4):
        if kb == 3: A("s_waitcnt lgkmcnt(6)")
        for s in range(4): A(k_read(16 * kb + 4 * s, vKB, kb, s))
    for j in range(3):
        A(f"s_waitcnt vmcnt({cfg.lead})")
        for s in range(4):
            A(f"ds_read_b128 {V4(vQ(j,s))}, v{vRD} offset:{j * 4 * BS + s * 256}")
        issue(4)
        for s in range(4):
            A(f"s_waitcnt lgkmcnt({3 - s})")
            q = vQ(j, s)
            for r in range(4):
                A(f"v_lshlrev_b32 v{t+2*r}, 16, v{q+r}")
                A(f"v_and_b32 v{t+2*r+1}, 0xffff0000, v{q+r}")
            for r in range(4): A(f"v_pk_mul_f32 {V2(t+2*r)}, {V2(t+2*r)}, s[34:35]")
            for r in range(4): A(f"v_cvt_pk_bf16_f32 v{q+r}, v{t+2*r}, v{t+2*r+1}")
        if j == 2 and cfg.st1 == 0: stamp(cfg, A, 1)
        A("s_nop 1")
        for kb in range(4):
            for s in range(4):
                d = vS(kb, j)
                A(f"{MF} {V4(d)}, {A4(16 * kb + 4 * s)}, {V4(vQ(j,s))}, {'0' if s == 0 else V4(d)}")
        s0 = vS(0, j)
        A(f"v_max3_f32 v{t}, v{s0}, v{s0+1}, v{s0+2}")
        A(f"v_max_f32 v{t}, v{t}, v{s0+3}")
        xmax(A, [t], [t + 1])
        for r in range(4): A(f"v_sub_f32 v{vNM(j)+r}, 0, v{t}")
        for kb in range(4):
            for r in range(4): A(f"v_sub_f32 v{vS(kb,j)+r}, v{vS(kb,j)+r}, v{t}")
        for n, (x, kb, jj) in enumerate(exps0):
            if jj == j and ("e", n) not in late: A(x)
        A("s_nop 0")
        for n, (x, kb, jj) in enumerate(cvts0):
            if jj == j and ("c", n) not in late: A(x)
    assert npc[0] == 4 * 5 + cfg.lead
    for r in range(0, 24, 2): A(f"v_mov_b64 {V2(vP(1,0,0)+r)}, 0")
    for r in range(16): A(f"v_accvgpr_write_b32 a{aF(1,0)+r}, 0")
    A(f"v_add_u32 v{vRD}, s{sRD}, v{vKB}")
    if cfg.ramp: A(f"s_mov_b32 s72, {cfg.ramp[0]}")
    if cfg.hold: A(f"s_mov_b32 s72, {cfg.hold[1]}")
    if cfg.early:
        code = sum((cfg.lead - k) << (2 * n + 2) for n, k in enumerate(cfg.early))
        assert all(0 <= cfg.lead - k <= 3 for k in cfg.early) and code < 1 << 64
        A(f"s_mov_b32 s48, {code & 0xffffffff:#x}"); A(f"s_mov_b32 s49, {code >> 32:#x}")
    carried = steps[0][3]
    for y in carried: A(y)
    stamp(cfg, A, 2)
    A("s_branch L_even")
    pro = L[code0:]
    A(".p2align 6")
    A("L_odd:")
    odd, even = [], []
    emit_slots(cfg, steps[1][0], odd.append)
    sl0 = steps[0][0]
    npieces = 4 * (4 + 2 * 15 + 1) + cfg.lead
    nv = sum(1 for p in range(npieces) if group(p // 4) == "V") + sum(1 for x in carried if x.startswith(f"s_add_u32 s{sV},"))
    sl0[-1].scalar.append(f"s_cmp_lt_u32 s{sV}, {(nv - 1) * 4096}")
    emit_slots(cfg, sl0, even.append)
    stubs = []
    for body in (even, odd):
        out = []
        for x in body:
            if x.startswith("@early"):
                loc = int(x.split()[1])
                if cfg.early:
                    out += ["s_lshr_b64 s[48:49], s[48:49], 2", f"s_cbranch_scc1 L_early{loc}", f"L_back{loc}:"]
                    stubs += [f"L_early{loc}:", "s_and_b32 s33, s48, 3"]
                    for n in range(1, 4):
                        stubs += [f"s_cmp_lt_u32 s33, {n}", f"s_cbranch_scc1 L_back{loc}", f"s_waitcnt vmcnt({max(0, cfg.lead - n)})"]
                    stubs.append(f"s_branch L_back{loc}")
            else:
                out.append(x)
        body[:] = out
    L.extend(odd)
    A("L_even:")
    L.extend(even)
    A("s_cbranch_scc1 L_odd")
    tail0 = len(L)
    stamp(cfg, A, 3)
    exps1, cvts1 = sm_ops(1)
    rest = [exps1[n][0] for k, n in late if k == "e"] + [cvts1[n][0] for k, n in late if k == "c"]
    t = vS(0, 0)
    x = vNM(0)
    rest = [f"v_add_u32 v{vRD}, s{sRD}, v{vVB}"] + rest + [f"v_accvgpr_read_b32 v{x+1+n}, a{aADDR+n}" for n in range(5)]
    A("s_waitcnt lgkmcnt(0)")
    g3 = pv_group(3, 1, 0)
    per = -(-len(rest) // 12)
    for sl in g3:
        A(sl.mfma)
        for _ in range(per):
            if rest: A(rest.pop(0))
    rl = lambda j: t + 4 + 4 * j
    ob = vP(0, 0, 0)
    def recip_ops(check):
        o = [f"v_accvgpr_read_b32 v{t+j}, a{aL(j)}" for j in range(3)]
        if check:
            o += [f"v_add_f32 v{t+3}, v{t}, v{t+1}", f"v_add_f32 v{t+3}, v{t+3}, v{t+2}", f"v_cmp_ngt_f32 vcc, s{sTHR}, v{t+3}"]
        o += [f"v_rcp_f32 v{t+j}, v{t+j}" for j in range(3)]
        d = [f"ds_write_b32 v{vLW}, v{t+j} offset:{LOFF + 64 * j}" for j in range(3)]
        d += [f"ds_read_b128 {V4(rl(j))}, v{vLR} offset:{LOFF + 64 * j}" for j in range(3)]
        return o, d
    def scale_ops(j, packed):
        if packed:
            return [f"v_pk_mul_f32 {V2(vO(j,b)+h)}, {V2(vO(j,b)+h)}, {V2(rl(j)+h)}" for h in (0, 2) for b in range(8)]
        return [f"v_mul_f32 v{vO(j,b)+r}, v{vO(j,b)+r}, v{rl(j)+r}" for r in range(4) for b in range(8)]
    def wreg(j, r): return t + 16 + 4 * ((j * 4 + r) % 8)
    def cvt_ops(j, r):
        return [f"v_cvt_pk_bf16_f32 v{wreg(j,r)+h}, v{vO(j,2*h)+r}, v{vO(j,2*h+1)+r}" for h in range(4)]
    def oreg(j, r): return (ob + (j * 4 + r) * 4) if j < 1 else (vQ(0, 0) + (j * 4 + r) * 4)
    def lds_ops(j, r):
        o = (j * 4 + r) * ESTR
        return [f"ds_write_b128 v{vEW}, {V4(wreg(j,r))} offset:{o}",
                f"ds_read_b64_tr_b16 {V2(oreg(j,r))}, v{vER} offset:{o}",
                f"ds_read_b64_tr_b16 {V2(oreg(j,r)+2)}, v{vER} offset:{o + 64}"]
    def store_op(j, r):
        off = f" offset:{r * 256}" if r else ""
        return f"buffer_store_dwordx4 {V4(oreg(j,r))}, v{vOST}, {SRD_O}, s{sQ+j} offen{off} {cfg.stflags}".rstrip()
    A(f"s_mul_i32 s{sQ}, s{sW}, 12288")
    A(f"s_waitcnt vmcnt({cfg.lead})")
    A("s_barrier")
    if cfg.st1 == 1: stamp(cfg, A, 1)
    def last_order(j):
        bs = range(8) if j % 2 == 0 else range(7, -1, -1)
        out = []
        for n, b in enumerate(bs):
            out += [(b, k) for k in ([0, 1] if n % 2 == 0 else [1, 0])]
        return out
    def last_mfma(j, b, k):
        return f"{MF} {V4(vO(j,b))}, {V4(vP(1,j,k))}, {A4(8 * b + 4 * k)}, {V4(vO(j,b))}"
    rd = [y for b, k in last_order(0) for y in v_read(8 * b + 4 * k, vRD, b, k)]
    nrd = 0
    for q, sl in enumerate(sum_group(1)):
        A(sl.mfma)
        if q == 0: A(f"s_add_u32 s{sQ+1}, s{sQ}, 4096")
        if q == 1: A(f"s_add_u32 s{sQ+2}, s{sQ}, 8192")
        if q == 5: A(f"s_waitcnt lgkmcnt({nrd - 2})")
        A(rd[nrd]); A(rd[nrd + 1]); nrd += 2
    rv, rdd = recip_ops(True)
    for q, (b, k) in enumerate(last_order(0)):
        A(last_mfma(0, b, k))
        if q < 15: A(f"s_waitcnt lgkmcnt({max(0, nrd - 2 * (q + 2))})")
        if nrd < 32:
            A(rd[nrd]); A(rd[nrd + 1]); nrd += 2
        elif q < 13:
            A(rv.pop(0)); A(rv.pop(0))
        elif q < 16:
            A(rv.pop(0))
    assert not rv
    fill = [rdd[0:2], rdd[2:4], rdd[4:6], ["s_branch L_slow" if cfg.force_slow else "s_cbranch_vccnz L_slow"], [], [], ["s_waitcnt lgkmcnt(0)"]]
    sc = scale_ops(0, False)
    for r in range(4):
        v = sc[8 * r:8 * r + 8] + cvt_ops(0, r)
        fill += [v[q:q + 2] for q in range(0, 12, 2)]
        fill.append(lds_ops(0, r))
    mf = [last_mfma(j, b, k) for j in (1, 2) for b, k in last_order(j)]
    slow_at = None
    for q, m in enumerate(mf):
        A(m)
        for y in fill.pop(0):
            A(y)
            if "L_slow" in y: slow_at = len(L)
    if cfg.st1 == 2: stamp(cfg, A, 1)
    for f in fill:
        for y in f: A(y)
    pend = [(0, r) for r in range(4)]
    def drain(n, younger):
        for q in range(n):
            j, r = pend.pop(0)
            A(f"s_waitcnt lgkmcnt({min(15, 3 * len(pend) + younger)})")
            A(store_op(j, r))
    drain(3, 0)
    for j in (1, 2):
        sc = scale_ops(j, True)
        for h in range(2):
            for y in sc[8 * h:8 * h + 8]: A(y)
            for r in (2 * h, 2 * h + 1):
                for y in cvt_ops(j, r): A(y)
            drain(len(pend), 0)
            for r in (2 * h, 2 * h + 1):
                for y in lds_ops(j, r): A(y)
                pend.append((j, r))
    drain(len(pend), 0)
    A("L_fin:")
    if cfg.stamps:
        stamp(cfg, A, 4)
        A("s_waitcnt vmcnt(0)")
        stamp(cfg, A, 5)
        A("s_mov_b32 s42, 0x100000"); A("s_mov_b32 s43, 0x20000")
        A("s_getreg_b32 s62, hwreg(HW_REG_XCC_ID)")
        A("s_waitcnt lgkmcnt(0)")
        for n in range(6): A(f"v_mov_b32 v{12+n}, s{50+2*n}")
        A("s_sub_u32 s66, s66, s64"); A("v_mov_b32 v18, s62"); A("v_mov_b32 v19, s66")
        A(f"s_lshl_b32 s37, s2, 2"); A(f"s_add_u32 s37, s37, s{sW}"); A("s_lshl_b32 s37, s37, 5")
        A("v_mov_b32 v10, s37")
        A(f"buffer_store_dwordx4 v[12:15], v10, {SRD_WS}, 0 offen")
        A(f"buffer_store_dwordx4 v[16:19], v10, {SRD_WS}, 0 offen offset:16")
    A("L_end:")
    A("s_endpgm")
    tail = L[tail0:]
    L.extend(stubs)
    slow0 = len(L)
    A("L_slow:")
    A("s_waitcnt vmcnt(0) lgkmcnt(0)")
    A("s_nop 7")
    vM, vAL, vAT, vMX = vP(1, 0, 0), vP(1, 0, 0) + 4, vP(1, 0, 0) + 8, vS(2, 0)
    HALF = 8 * BS
    A("s_lshl_b32 s39, s2, 18")
    A("s_add_u32 s16, s6, s39"); A("s_addc_u32 s17, s7, 0")
    A("s_mov_b32 s18, 262144"); A("s_mov_b32 s22, 262144")
    A(f"s_lshl_b32 s38, s{sW}, 10")
    A(f"v_subrev_u32 v{vDMA}, s38, v{vDMA}")
    A(f"v_add_u32 v{vKB}, s{sPRIV}, v{vKB}")
    A(f"v_add_u32 v{vVB}, s{sPRIV}, v{vVB}")
    for r in range(0, 96, 2): A(f"v_mov_b64 {V2(vO(0,0)+r)}, 0")
    for r in range(12): A(f"v_accvgpr_write_b32 a{aL(0)+r}, 0")
    for j in range(3): A(f"v_mov_b32 v{vM+j}, 0xff7fffff")
    A(f"s_mov_b32 s{sK}, 0")
    slowl0 = len(L)
    A("L_slow_loop:")
    for srd, base in ((SRD_K, 0), (SRD_V, HALF)):
        for a in range(8):
            A(f"s_add_u32 m0, s{sPRIV}, {base + a * BS}")
            A(f"s_add_u32 s38, s{sK}, {a * 1024}")
            A(f"buffer_load_dwordx4 v{vDMA}, {srd}, s38 offen lds")
    A("s_waitcnt vmcnt(0)")
    for kb in range(2):
        for s in range(4): A(k_read(16 * kb + 4 * s, vKB, kb, s))
    A("s_waitcnt lgkmcnt(0)")
    for b in range(8):
        for y in v_read(32 + 4 * b, vVB, b, 0, HALF): A(y)
        if b == 3: A("s_waitcnt lgkmcnt(0)")
    for kb in range(2):
        for j in range(3):
            for s in range(4):
                d = vS(kb, j)
                A(f"{MF} {V4(d)}, {A4(16 * kb + 4 * s)}, {V4(vQ(j,s))}, {'0' if s == 0 else V4(d)}")
    A("s_nop 7")
    for j in range(3):
        s0, s1 = vS(0, j), vS(1, j)
        A(f"v_max3_f32 v{vMX+j}, v{s0}, v{s0+1}, v{s0+2}")
        A(f"v_max3_f32 v{vMX+j}, v{vMX+j}, v{s0+3}, v{s1}")
        A(f"v_max3_f32 v{vMX+j}, v{vMX+j}, v{s1+1}, v{s1+2}")
        A(f"v_max3_f32 v{vMX+j}, v{vMX+j}, v{s1+3}, v{vM+j}")
    xmax(A, [vMX + j for j in range(3)], [vMX + 4 + j for j in range(3)])
    for j in range(3): A(f"v_sub_f32 v{vAL+j}, v{vM+j}, v{vMX+j}")
    for j in range(3): A(f"v_exp_f32 v{vAL+j}, v{vAL+j}")
    for j in range(3): A(f"v_mov_b32 v{vM+j}, v{vMX+j}")
    A("s_waitcnt lgkmcnt(0)")
    for j in range(3): A(f"ds_write_b32 v{vLW}, v{vAL+j} offset:{64 * j}")
    A("s_waitcnt lgkmcnt(0)")
    for j in range(3): A(f"ds_read_b128 {V4(vAT + 4 * j)}, v{vLR} offset:{64 * j}")
    for j in range(3):
        for r in range(4):
            A(f"v_accvgpr_read_b32 v{vMX+8}, a{aL(j)+r}")
            A(f"v_mul_f32 v{vMX+8}, v{vMX+8}, v{vAL+j}")
            A(f"v_accvgpr_write_b32 a{aL(j)+r}, v{vMX+8}")
    for kb in range(2):
        for j in range(3):
            for r in range(4): A(f"v_sub_f32 v{vS(kb,j)+r}, v{vS(kb,j)+r}, v{vM+j}")
    for y, kb, j in exps0:
        if kb < 2: A(y)
    A("s_waitcnt lgkmcnt(0)")
    for y, kb, j in cvts0:
        if kb < 2: A(y)
    for j in range(3):
        for b in range(8):
            for r in range(4): A(f"v_mul_f32 v{vO(j,b)+r}, v{vO(j,b)+r}, v{vAT+4*j+r}")
    A("s_nop 1")
    for j in range(3): A(f"{MF} {A4(aL(j))}, {A4(aONE)}, {V4(vP(0,j,0))}, {A4(aL(j))}")
    for b in range(8):
        for j in range(3):
            A(f"{MF} {V4(vO(j,b))}, {V4(vP(0,j,0))}, {A4(32 + 4 * b)}, {V4(vO(j,b))}")
    A(f"s_add_u32 s{sK}, s{sK}, 8192")
    A(f"s_cmp_lt_u32 s{sK}, 262144")
    A("s_cbranch_scc1 L_slow_loop")
    slowl1 = len(L)
    A("s_nop 7")
    rv, rdd = recip_ops(False)
    for y in rv + ["s_nop 0"] + rdd + ["s_waitcnt lgkmcnt(0)"]: A(y)
    A(f"s_add_u32 s{sQ+1}, s{sQ}, 4096"); A(f"s_add_u32 s{sQ+2}, s{sQ}, 8192")
    for j in range(3):
        for y in scale_ops(j, True): A(y)
        for r in range(4):
            for y in cvt_ops(j, r) + lds_ops(j, r): A(y)
        A("s_waitcnt lgkmcnt(0)")
        for r in range(4): A(store_op(j, r))
    A("s_branch L_fin")
    errs = check_hazards(pro + even + odd + even + tail, "fast")
    errs += check_hazards(L[tail0:slow_at] + L[slow0:slowl1] + L[slowl0:], "slow")
    if errs:
        raise RuntimeError("\n".join(errs))
    A('.section .rodata,"a"')
    A(".p2align 6")
    A(f".amdhsa_kernel {NAME}")
    A(f"  .amdhsa_next_free_vgpr {256 + NAGPR}")
    A("  .amdhsa_next_free_sgpr 102")
    A("  .amdhsa_accum_offset 256")
    A("  .amdhsa_group_segment_fixed_size 0")
    A("  .amdhsa_kernarg_size 48")
    A("  .amdhsa_user_sgpr_count 2")
    A("  .amdhsa_user_sgpr_kernarg_segment_ptr 1")
    A("  .amdhsa_system_sgpr_workgroup_id_x 1")
    A("  .amdhsa_float_denorm_mode_32 3")
    A(".end_amdhsa_kernel")
    out = []
    for l in L:
        out.append(l if (l.endswith(":") or l.startswith((".", ";", " "))) else "    " + l)
    return "\n".join(out) + "\n"

if __name__ == "__main__":
    kw = {}
    for a in sys.argv[1:]:
        k, v = a.split("=", 1)
        try: v = eval(v)
        except Exception: pass
        kw[k] = v
    sys.stdout.write(gen(Cfg(**kw)))
```

```python
import re

def regs(tok):
    tok = tok.strip()
    tok = tok.replace("-", "") if tok.startswith("-") else tok
    m = re.fullmatch(r"abs\((.*)\)|\|(.*)\|", tok)
    if m: tok = m.group(1) or m.group(2)
    m = re.fullmatch(r"([vas])\[(\d+):(\d+)\]", tok)
    if m: return {f"{m.group(1)}{i}" for i in range(int(m.group(2)), int(m.group(3)) + 1)}
    m = re.fullmatch(r"([vas])(\d+)", tok)
    if m: return {tok}
    if tok in ("vcc", "m0", "exec"): return {tok}
    return set()

TRANS = ("v_exp_f32", "v_log_f32", "v_rcp_f32", "v_rsq_f32", "v_sqrt_f32")

class Ins:
    def __init__(self, text):
        self.text = text
        t = text.split(";")[0].strip()
        self.label = t.endswith(":")
        self.directive = t.startswith(".") and not self.label
        self.op = t.split()[0] if t and not self.label else ""
        rest = t[len(self.op):].strip() if self.op else ""
        ops = [o.strip() for o in rest.split(",")] if rest else []
        if ops:
            last = ops[-1].split()
            self.mods = last[1:]
            ops[-1] = last[0]
        else:
            self.mods = []
        self.ops = ops
        op = self.op
        self.mfma = op.startswith("v_mfma")
        self.valu = op.startswith("v_") and not self.mfma
        self.trans = any(op.startswith(x) for x in TRANS)
        self.ds = op.startswith("ds_")
        self.vmem = op.startswith("buffer_") or op.startswith("global_")
        self.salu = op.startswith("s_")
        self.dma = self.vmem and "lds" in self.mods
        self.w, self.r = set(), set()
        self.srcc = set()
        if self.label or self.directive or not op:
            return
        if self.mfma:
            self.w = regs(ops[0]); self.srcc = regs(ops[3]); self.ab = regs(ops[1]) | regs(ops[2]); self.r = self.ab | self.srcc
        elif op.startswith("v_permlane"):
            self.w = regs(ops[0]) | regs(ops[1]); self.r = set(self.w)
        elif op.startswith("v_cmp"):
            self.w = regs(ops[0]); self.r = set().union(*[regs(o) for o in ops[1:]])
        elif self.valu:
            self.w = regs(ops[0]); self.r = set().union(*[regs(o) for o in ops[1:]]) if len(ops) > 1 else set()
            if op.startswith("v_fmac"): self.r |= self.w
        elif op.startswith("ds_read"):
            self.w = regs(ops[0]); self.r = regs(ops[1])
        elif op.startswith("ds_write"):
            self.r = set().union(*[regs(o) for o in ops])
        elif self.dma:
            self.r = set().union(*[regs(o) for o in ops]) | {"m0"}
        elif op.startswith("buffer_load"):
            self.w = regs(ops[0]); self.r = set().union(*[regs(o) for o in ops[1:]])
        elif op.startswith("buffer_store"):
            self.r = set().union(*[regs(o) for o in ops]); self.data = regs(ops[0])
        elif self.salu:
            if op.startswith(("s_cmp", "s_waitcnt", "s_nop", "s_barrier", "s_branch", "s_cbranch", "s_endpgm", "s_setprio")):
                self.r = set().union(*[regs(o) for o in ops]) if ops else set()
            else:
                self.w = regs(ops[0]); self.r = set().union(*[regs(o) for o in ops[1:]]) if len(ops) > 1 else set()
    def states(self):
        if self.label or self.directive or not self.op: return 0
        if self.op == "s_nop": return int(self.ops[0], 0) + 1
        return 1

def passes(i):
    return 8 if "32x32" in i.op else 4

def check_hazards(lines, name=""):
    ins = [Ins(l) for l in lines]
    ins = [i for i in ins if i.states() > 0]
    errs = []
    for n, c in enumerate(ins):
        dist = 0
        for p in reversed(ins[max(0, n - 24):n]):
            need = 0
            v = lambda s: {x for x in s if x[0] in "va" and x not in ("vcc",)}
            if p.valu and c.mfma and (v(p.w) & c.r): need = max(need, 2)
            if p.mfma:
                d = 8 if passes(p) == 4 else 12
                if c.mfma:
                    if p.w & c.ab: need = max(need, d)
                    if (p.w & c.srcc) and p.w != c.srcc: need = max(need, d - 2)
                    if (p.w & c.w) and not (p.w & c.srcc): need = max(need, d)
                elif (c.valu or c.ds or c.vmem) and (p.w & (c.r | c.w)): need = max(need, d)
                if c.valu and (p.srcc & c.w): need = max(need, 3 if passes(p) == 4 else 7)
            if p.trans and c.valu and not c.trans and (p.w & c.r): need = max(need, 1)
            if p.valu and c.op.startswith("v_permlane") and (v(p.w) & c.r): need = max(need, 2)
            if p.valu and c.op.startswith(("v_readfirstlane", "v_readlane")) and (v(p.w) & c.r): need = max(need, 1)
            if p.valu and "dpp" in c.op and (v(p.w) & c.r): need = max(need, 2)
            if p.salu and "m0" in p.w and c.dma: need = max(need, 1)
            sw = {x for x in p.w if x[0] == "s" or x == "vcc"}
            if p.valu and c.vmem and (sw & c.r): need = max(need, 5)
            if p.valu and c.valu and (sw & c.r): need = max(need, 2)
            if p.op.startswith("buffer_store_dwordx4") and (p.data & c.w): need = max(need, 2 if c.valu else 1)
            if need > dist:
                errs.append(f"{name}: need {need} have {dist}: [{p.text}] -> [{c.text}]")
            dist += p.states()
    return errs

def check_lgkm(lines, name=""):
    errs, q = [], []
    for l in lines:
        i = Ins(l)
        if i.states() == 0: continue
        if i.op == "s_waitcnt":
            m = re.search(r"lgkmcnt\((\d+)\)", l)
            if m:
                n = int(m.group(1))
                q = q[len(q) - n:] if n < len(q) else q
                if n == 0: q = []
            continue
        for w, t in q:
            if w & (i.r | i.w): errs.append(f"{name}: [{t}] not waited before [{l}]")
        if i.ds:
            q.append((set(i.w), l))
            if len(q) > 15: errs.append(f"{name}: {len(q)} LDS ops outstanding at [{l}]")
    return errs
```

```python
import math, struct, sys
from asmlib import Ins, check_hazards, check_lgkm

NAME = "standalone__mha_softmax__near_ridge_kernel"
BS = 1056
TILE = 16 * BS
PRIVSZ = TILE
ESTR = 1280
LOFF = 12 * ESTR

def f2u(x): return struct.unpack("<I", struct.pack("<f", x))[0]
C_SCALE = f2u(math.log2(math.e) / math.sqrt(128.0))
L_MAX = f2u(2.0 ** 40)

vDMA, vKB, vVB, vRD = 0, 1, 2, 3
def vO(j, b): return 4 + (j * 8 + b) * 4
def vS(kb, j): return 100 + (kb * 3 + j) * 4
def vP(par, j, k): return 148 + par * 24 + (j * 2 + k) * 4
def vNM(j): return 196 + j * 4
def vQ(j, s): return 208 + (j * 4 + s) * 4
def aF(st, i): return st * 16 + i * 4
aONE = 64
def aL(j): return 68 + j * 4
aADDR = 80
aLAST = 88
NAGPR = 152
def V4(r): return f"v[{r}:{r+3}]"
def V2(r): return f"v[{r}:{r+1}]"
def A4(r): return f"a[{r}:{r+3}]"
def A2(r): return f"a[{r}:{r+1}]"
sW, sWR, sPRIV, sK, sV, sRD, sTHR, sWEND, sW0, sQ = 3, 28, 29, 30, 31, 32, 36, 44, 45, 37
sALT = 46
SRD_Q, SRD_K, SRD_V, SRD_O, SRD_WS = "s[12:15]", "s[16:19]", "s[20:23]", "s[24:27]", "s[40:43]"
MF = "v_mfma_f32_16x16x32_bf16"

class Cfg:
    lead = 4
    ns = 5
    ldflags = "nt"
    stflags = "nt"
    dma_slots = (1, 13, 25, 37)
    rd_slots = (0, 2, 4, 6)
    early = ()
    stamps = False
    st1 = 0
    force_slow = False
    tst = False
    pad = 0
    nodma = False
    hold = None
    ramp = None
    def __init__(self, **kw):
        for k, v in kw.items():
            assert hasattr(Cfg, k), k
            setattr(self, k, v)
        assert self.ns >= max(5, 3 + (self.lead + 3) // 4) and self.lead <= 8
        self.priv = self.ns * TILE
        self.lds = self.priv + 4 * PRIVSZ
        assert self.lds <= 163840

def group(g):
    if g == 0: return "K"
    if g <= 3: return "Q"
    return "K" if (g - 4) % 2 == 0 else "V"

def dma_piece(cfg, p):
    g, i = divmod(p, 4)
    kind = group(g)
    pre = []
    if kind == "Q":
        n = (g - 1) * 4 + i
        pre.append([f"s_add_u32 m0, s{sPRIV}, {n * BS}"])
        pre.append([f"s_add_u32 s{sQ}, s{sQ}, 1024"])
        return pre, f"buffer_load_dwordx4 v{vDMA}, {SRD_Q}, s{sQ} offen {cfg.ldflags} lds".replace("  ", " ")
    so = sK if kind == "K" else sV
    if i == 0:
        pre.append([f"s_add_u32 s{sWR}, s{sWR}, {TILE}"])
        pre.append([f"s_cmp_eq_u32 s{sWR}, s{sWEND}", f"s_cselect_b32 s{sWR}, s{sW0}, s{sWR}"])
    pre.append([f"s_add_u32 m0, s{sWR}, {4 * i * BS}"] if i else [f"s_mov_b32 m0, s{sWR}"])
    pre.append([f"s_add_u32 s{so}, s{so}, 4096"])
    if kind == "K" and i == 0 and cfg.lead > 4:
        pre.append([f"s_cmp_eq_u32 s{sK}, 262144", f"s_cselect_b64 s[16:17], s[{sALT}:{sALT+1}], s[16:17]"])
    srd = SRD_K if kind == "K" else SRD_V
    return pre, f"buffer_load_dwordx4 v{vDMA}, {srd}, s{so} offen {cfg.ldflags} lds".replace("  ", " ")

def k_read(dst, base, kb, s, off=0):
    return f"ds_read_b128 {A4(dst)}, v{base} offset:{off + kb * 4 * BS + s * 256}"

def v_read(dst, base, b, k, off=0):
    o = off + 8 * k * BS + (b >> 1) * 256 + (b & 1) * 32
    return [f"ds_read_b64_tr_b16 {A2(dst)}, v{base} offset:{o}",
            f"ds_read_b64_tr_b16 {A2(dst + 2)}, v{base} offset:{o + 4 * BS}"]

def qk_order(kb):
    js = [0, 1, 2] if kb % 2 == 0 else [2, 1, 0]
    out = []
    for n, j in enumerate(js):
        up = (kb * 3 + n) % 2 == 0
        out += [(j, s) for s in ([0, 1, 2, 3] if up else [3, 2, 1, 0])]
    return out

def pv_order(g):
    out = []
    for bb in range(2):
        b = 2 * g + bb
        js = [0, 1, 2] if b % 2 == 0 else [2, 1, 0]
        for n, j in enumerate(js):
            up = (b * 3 + n) % 2 == 0
            out += [(b, j, k) for k in ([0, 1] if up else [1, 0])]
    return out

class Slot:
    def __init__(self, mfma, frag=None):
        self.mfma, self.frag = mfma, frag
        self.pre, self.scalar, self.ds, self.dma, self.valu = [], [], [], [], []
        self.dsfrag = []
    def cap(self):
        return 8 - 4 * len(self.ds) - 8 * len(self.dma) - 4 * max(0, len(self.scalar) - 1) - sum(8 if "v_exp" in v else 4 for v in self.valu)

def qk_group(kb, st):
    sl, seen = [], set()
    for j, s in qk_order(kb):
        d = vS(kb, j)
        c = V4(d) if j in seen else V4(vNM(j))
        seen.add(j)
        sl.append(Slot(f"{MF} {V4(d)}, {A4(aF(st, s))}, {V4(vQ(j, s))}, {c}", (st, s)))
    return sl

def pv_group(g, st, par):
    return [Slot(f"{MF} {V4(vO(j, b))}, {V4(vP(par, j, k))}, {A4(aF(st, (b & 1) * 2 + k))}, {V4(vO(j, b))}", (st, (b & 1) * 2 + k))
            for b, j, k in pv_order(g)]

def sum_group(par):
    return [Slot(f"{MF} {A4(aL(j))}, {A4(aONE)}, {V4(vP(par, j, k))}, {A4(aL(j))}") for j in range(3) for k in range(2)]

def first_use(slots):
    out = []
    for s in slots:
        if s.frag not in out: out.append(s.frag)
    return out

def k_reads_for(kb, st):
    return [([k_read(aF(st, fr[1]), vRD, kb, fr[1])], fr) for fr in first_use(qk_group(kb, st))]

def v_reads_for(g, st):
    return [(v_read(aF(st, fr[1]), vRD, 2 * g + (fr[1] >> 1), fr[1] & 1), fr) for fr in first_use(pv_group(g, st, 0))]

def sm_ops(par):
    exps, cvts = [], []
    for kb in range(4):
        js = [0, 1, 2] if kb % 2 == 0 else [2, 1, 0]
        for j in js:
            s = vS(kb, j)
            for h in range(2):
                exps += [(f"v_exp_f32 v{s+2*h}, v{s+2*h}", kb, j), (f"v_exp_f32 v{s+2*h+1}, v{s+2*h+1}", kb, j)]
                cvts.append((f"v_cvt_pk_bf16_f32 v{vP(par, j, kb >> 1) + 2 * (kb & 1) + h}, v{s+2*h}, v{s+2*h+1}", kb, j))
    return exps, cvts

def ring_advance(cfg, base):
    return ([[f"s_add_u32 s{sRD}, s{sRD}, {TILE}"], [f"s_cmp_eq_u32 s{sRD}, {cfg.ns * TILE}", f"s_cselect_b32 s{sRD}, 0, s{sRD}"]],
            f"v_add_u32 v{vRD}, s{sRD}, v{base}")

def build_step(cfg, par, peeled=None):
    groups = [pv_group(3, 1, par ^ 1), qk_group(0, 0), qk_group(1, 1), qk_group(2, 0), qk_group(3, 1),
              sum_group(par), pv_group(0, 0, par), pv_group(1, 1, par), pv_group(2, 0, par)]
    reads = [k_reads_for(0, 0), k_reads_for(1, 1), k_reads_for(2, 0), k_reads_for(3, 1), v_reads_for(0, 0),
             [], v_reads_for(1, 1), v_reads_for(2, 0), v_reads_for(3, 1)]
    slots, gs = [], []
    for g, rd in zip(groups, reads):
        gs.append(len(slots))
        for pos, (ins, fr) in zip(cfg.rd_slots, rd):
            g[pos].ds += ins
            g[pos].dsfrag += [fr] * len(ins)
        slots += g
    n = len(slots)
    issued = []
    done = -1
    waits = {}
    for rep in range(2):
        for i, s in enumerate(slots):
            if s.frag is not None:
                need = max((q for q, fr in enumerate(issued) if fr == s.frag), default=-1)
                if need > done:
                    nxt = slots[(i + 1) % n].frag
                    need = max(need, max((q for q, fr in enumerate(issued) if fr == nxt), default=-1)) if nxt else need
                    prev = slots[i - 1]
                    total = len(issued) - len(prev.ds)
                    if i in (gs[0], gs[4]): total = len(issued)
                    assert need < total
                    if rep == 1: waits[i] = total - 1 - need
                    done = need
            issued += s.dsfrag
    for i, c in waits.items():
        if i not in (gs[0], gs[4]):
            slots[i - 1].scalar.append(f"s_waitcnt lgkmcnt({c})")
    for i in (gs[0], gs[4]):
        p = cfg.pad
        while p > 0:
            slots[i].pre.append(f"s_nop {min(p, 16) - 1}"); p -= 16
        if cfg.ramp:
            lab = f"L_ramp_{par}_{i}"
            slots[i].pre += ["s_cselect_b32 s75, 1, 0", "s_mov_b32 s74, s72", f"{lab}:", "s_sub_i32 s74, s74, 1", "s_cmp_gt_i32 s74, 0", f"s_cbranch_scc1 {lab}",
                             f"s_sub_i32 s72, s72, {cfg.ramp[1]}", f"s_max_i32 s72, s72, {cfg.ramp[2]}", "s_cmp_lg_u32 s75, 0"]
        if cfg.hold:
            lab = f"L_hold_{par}_{i}"
            slots[i].pre += ["s_cselect_b32 s75, 1, 0", "s_sub_i32 s72, s72, 1", "s_cmp_lt_i32 s72, 0", f"s_cbranch_scc1 {lab}_x", f"s_mov_b32 s74, {cfg.hold[0]}",
                             f"{lab}:", "s_sub_i32 s74, s74, 1", "s_cmp_gt_i32 s74, 0", f"s_cbranch_scc1 {lab}", f"{lab}_x:", "s_cmp_lg_u32 s75, 0"]
        lg = f" lgkmcnt({waits[i]})" if i in waits else ""
        if peeled:
            slots[i].pre = [f"s_waitcnt vmcnt({peeled[0 if i == gs[0] else 1]}){lg}", "s_barrier"]
        else:
            slots[i].pre += [f"@early {par * 2 + (0 if i == gs[0] else 1)}", f"s_waitcnt vmcnt({cfg.lead}){lg}", "s_barrier"]
    for ph, start in enumerate((gs[0], gs[4])):
        for m, off in enumerate(cfg.dma_slots):
            pre, ld = dma_piece(cfg, 4 * (4 + ph + 1) + cfg.lead + m + 8)
            i = start + off
            assert not slots[i].ds and not slots[i].dma, (i, off)
            slots[i].dma.append(ld)
            slots[i].dmapre = pre
    dmas = [i for i, s in enumerate(slots) if s.dma]
    gaps = []
    for q, i in enumerate(dmas):
        prev = dmas[q - 1] - (n if q == 0 else 0)
        gaps.append([prev + 1, i, list(slots[i].dmapre)])
    lastrd = {gs[4]: gs[3] + cfg.rd_slots[-1], n: gs[8] + cfg.rd_slots[-1]}
    for start, base, lo in ((gs[4], vVB, 0), (n, vKB, gs[4])):
        runs, va = ring_advance(cfg, base)
        at = max(i for i in range(lastrd[start] + 1, start) if slots[i].cap() >= 4 and i < start - 1)
        slots[at].valu.append(va)
        def room(g):
            return sum(1 for x in range(g[0], g[1] + 1) if not slots[x % n].scalar) - sum(len(r) for r in g[2])
        g = max((g for g in gaps if g[0] >= lo and g[1] < at), key=room)
        g[2] = runs + g[2]
    carried = []
    for lo, hi, runs in gaps:
        flat = [(x, len(r) == 2 and k == 1) for r in runs for k, x in enumerate(r)]
        free = [x for x in range(lo, hi + 1) if not slots[x % n].scalar and x != -1]
        if len(free) < len(flat):
            free = sorted(free + [hi] * (len(flat) - len(free)))
        tgt = free[-len(flat):]
        for k, (x, second) in enumerate(flat):
            if second and (tgt[k - 1] < 0 <= tgt[k] or tgt[k - 1] < gs[4] <= tgt[k]): tgt[k] = tgt[k - 1]
            slots[tgt[k] % n].scalar.append(x)
            if tgt[k] < 0: carried.append(x)
    chain_end, chain_start = {}, {}
    for kb in range(4):
        for q, (j, s) in enumerate(qk_order(kb)):
            chain_end[(kb, j)] = gs[1 + kb] + q
            chain_start.setdefault((kb, j), gs[1 + kb] + q)
    start = chain_end[(0, 0)] + 8
    ops = {p: sm_ops(p) for p in (0, 1)}
    ne = nc = 0
    late = []
    for t in range(start, start + n):
        i, wrapped = t % n, t >= n
        sl = slots[i]
        exps, cvts = ops[par if wrapped else par ^ 1]
        ne0 = ne
        if sl.cap() >= 8 and ne < 48 and t >= chain_end[exps[ne][1:]] + 5:
            sl.valu.append(exps[ne][0])
            if wrapped: late.append(("e", ne))
            ne += 1
        else:
            while sl.cap() >= 4 and nc < 24 and 2 * nc + 2 <= ne0:
                assert t < n + chain_start[cvts[nc][1:]] and t < n + gs[5] - 1
                sl.valu.append(cvts[nc][0])
                if wrapped: late.append(("c", nc))
                nc += 1
    assert ne == 48 and nc == 24, (ne, nc)
    if peeled:
        exps, cvts = ops[par ^ 1]
        done = set()
        late = list(late)
        for i, sl in enumerate(slots):
            wr = (f"s_add_u32 s{sWR},", f"s_cmp_eq_u32 s{sWR},", f"s_cselect_b32 s{sWR},", "s_add_u32 m0,", "s_mov_b32 m0,",
                  f"s_add_u32 s{sK},", f"s_add_u32 s{sV},", f"s_cmp_eq_u32 s{sK},", "s_cselect_b64")
            sl.scalar = [y for y in sl.scalar if not y.startswith(wr)]
            sl.dma = []
            if i >= start:
                while sl.cap() >= 4:
                    c = next((c for k, c in late if k == "c" and exps[2 * c][0] in done and exps[2 * c + 1][0] in done), None)
                    if c is None: break
                    late.remove(("c", c)); sl.valu.append(cvts[c][0])
                done |= set(sl.valu)
        for sl in slots[gs[8]:]:
            sl.valu = [f"v_add_u32 v{vRD}, s{sRD}, v{vVB}" if y.startswith(f"v_add_u32 v{vRD},") else y for y in sl.valu]
    return slots, gs, late, carried

def emit_slots(cfg, slots, A):
    for sl in slots:
        for x in sl.pre: A(x)
        A(sl.mfma)
        for x in sl.scalar + sl.ds + ([] if cfg.nodma else sl.dma) + sl.valu: A(x)

def xmax(A, regs, tmp):
    for op in ("v_permlane16_swap_b32", "v_permlane32_swap_b32"):
        for r, x in zip(regs, tmp): A(f"v_mov_b32 v{x}, v{r}")
        A("s_nop 1")
        for r, x in zip(regs, tmp): A(f"{op} v{r}, v{x}")
        for r, x in zip(regs, tmp): A(f"v_max_f32 v{r}, v{r}, v{x}")

def stamp(cfg, A, n):
    if cfg.stamps:
        A(f"s_memrealtime s[{50+2*n}:{51+2*n}]")
        if n == 2: A("s_memtime s[64:65]")
        if n == 3: A("s_memtime s[66:67]")

def ts(cfg, n):
    return [f"s_memtime s[{76+2*n}:{77+2*n}]"] if cfg.tst else []

def gen(cfg):
    L = []
    A = L.append
    A(f"; @launch grid=(256,1,1) block=(256,1,1) lds={cfg.lds}")
    A('.amdgcn_target "amdgcn-amd-amdhsa--gfx950"')
    A(".text")
    A(f".globl {NAME}")
    A(".p2align 8")
    A(f".type {NAME},@function")
    A(f"{NAME}:")
    code0 = len(L)
    stamp(cfg, A, 0)
    A("s_cmp_ge_u32 s2, 256")
    A("s_cbranch_scc1 L_end")
    A("s_load_dwordx8 s[4:11], s[0:1], 0")
    if cfg.stamps: A("s_load_dwordx2 s[40:41], s[0:1], 40")
    t = vP(1, 0, 0)
    A(f"v_lshrrev_b32 v{t}, 6, v0")
    A(f"v_and_b32 v{t+1}, 63, v0")
    A(f"v_readfirstlane_b32 s{sW}, v{t}")
    A(f"v_and_b32 v{t+2}, 3, v0")
    A(f"v_bfe_u32 v{t+3}, v0, 2, 2")
    A(f"v_lshrrev_b32 v{t+4}, 4, v{t+1}")
    A(f"v_lshlrev_b32 v{vDMA}, 4, v{t+2}")
    A(f"v_lshl_add_u32 v{vDMA}, v{t+3}, 8, v{vDMA}")
    A(f"v_lshl_add_u32 v{vDMA}, v{t+4}, 6, v{vDMA}")
    A(f"v_lshl_add_u32 v{vDMA}, v{t}, 10, v{vDMA}")
    A("s_lshl_b32 s39, s2, 18")
    A("s_mul_i32 s38, s2, 49152")
    A(f"s_mul_i32 s{sW0}, s{sW}, {BS}")
    A(f"s_mul_i32 s{sPRIV}, s{sW}, {PRIVSZ}")
    A(f"s_mul_i32 s{sQ}, s{sW}, {12288 - 1024}")
    A(f"s_add_u32 s{sPRIV}, s{sPRIV}, {cfg.priv}")
    A(f"s_add_u32 s{sWEND}, s{sW0}, {cfg.ns * TILE}")
    A(f"s_sub_u32 s{sWR}, s{sW0}, {TILE}")
    A(f"s_sub_u32 s{sQ}, s{sQ}, 1024")
    A("s_mov_b32 s14, 49152"); A("s_mov_b32 s15, 0x20000")
    A(f"s_mov_b32 s18, {262144 + (16384 if cfg.lead > 4 else 0)}"); A("s_mov_b32 s19, 0x20000")
    A(f"s_mov_b32 s22, {262144 - (16384 if cfg.lead > 4 else 0)}"); A("s_mov_b32 s23, 0x20000")
    A("s_mov_b32 s26, 49152"); A("s_mov_b32 s27, 0x20000")
    A(f"s_mov_b32 s{sK}, -4096"); A(f"s_mov_b32 s{sV}, -4096")
    A("s_waitcnt lgkmcnt(0)")
    A("s_add_u32 s16, s6, s39"); A("s_addc_u32 s17, s7, 0")
    A("s_add_u32 s20, s8, s39"); A("s_addc_u32 s21, s9, 0")
    if cfg.lead > 4:
        A(f"s_sub_u32 s{sALT}, s20, 16384"); A(f"s_subb_u32 s{sALT+1}, s21, 0")
    A("s_add_u32 s12, s4, s38"); A("s_addc_u32 s13, s5, 0")
    npc = [0]
    def issue(n):
        for _ in range(n):
            pre, ld = dma_piece(cfg, npc[0]); npc[0] += 1
            for r in pre:
                for x in r: A(x)
            A(ld)
    issue(4 + cfg.lead)
    A("s_add_u32 s24, s10, s38"); A("s_addc_u32 s25, s11, 0")
    x = vNM(0)
    A(f"v_mov_b32 v{x}, v{t+1}")
    vEW, vER, vOST, vLW, vLR = x + 1, x + 2, x + 3, x + 4, x + 5
    addr = [f"v_lshrrev_b32 v{x+6}, 4, v{x}", f"v_and_b32 v{x+7}, 15, v{x}", f"v_and_b32 v{x+8}, 1, v{x}",
            f"v_bfe_u32 v{x+9}, v{x}, 1, 1", f"v_bfe_u32 v{x+10}, v{x}, 2, 2",
            f"v_lshlrev_b32 v{vEW}, 4, v{x}", f"v_lshl_add_u32 v{vEW}, v{x+6}, 6, v{vEW}", f"v_add_u32 v{vEW}, s{sPRIV}, v{vEW}",
            f"v_mul_u32_u24 v{vER}, 320, v{x+6}", f"v_lshl_add_u32 v{vER}, v{x+8}, 7, v{vER}", f"v_lshl_add_u32 v{vER}, v{x+10}, 4, v{vER}",
            f"v_lshl_add_u32 v{vER}, v{x+9}, 3, v{vER}", f"v_add_u32 v{vER}, s{sPRIV}, v{vER}",
            f"v_lshl_add_u32 v{vLW}, v{x+7}, 2, s{sPRIV}", f"v_lshl_add_u32 v{vLR}, v{x+6}, 4, s{sPRIV}",
            f"v_and_b32 v{x+8}, 3, v{x}", f"v_bfe_u32 v{x+9}, v{x}, 2, 1", f"v_bfe_u32 v{x+10}, v{x}, 3, 1",
            f"v_lshlrev_b32 v{vOST}, 10, v{x+6}", f"v_lshl_add_u32 v{vOST}, v{x+8}, 5, v{vOST}",
            f"v_lshl_add_u32 v{vOST}, v{x+9}, 4, v{vOST}", f"v_lshl_add_u32 v{vOST}, v{x+10}, 7, v{vOST}"]
    for y in addr: A(y)
    for n in range(5): A(f"v_accvgpr_write_b32 a{aADDR+n}, v{x+1+n}")
    A(f"v_mul_u32_u24 v{vKB}, {BS}, v{t+3}")
    A(f"v_lshl_add_u32 v{vKB}, v{t+2}, 6, v{vKB}")
    A(f"v_lshl_add_u32 v{vKB}, v{t+4}, 4, v{vKB}")
    A(f"v_mul_u32_u24 v{vVB}, {BS}, v{t+4}")
    A(f"v_lshl_add_u32 v{vVB}, v{t+3}, 6, v{vVB}")
    A(f"v_lshl_add_u32 v{vVB}, v{t+2}, 3, v{vVB}")
    A(f"v_add_u32 v{vRD}, s{sPRIV}, v{vKB}")
    A(f"s_mov_b32 s34, {C_SCALE:#x}"); A(f"s_mov_b32 s35, {C_SCALE:#x}")
    A(f"s_mov_b32 s{sTHR}, {L_MAX:#x}")
    A(f"s_mov_b32 s{sRD}, {TILE}")
    A("s_mov_b32 s33, 0x3f803f80")
    for r in range(0, 96, 2): A(f"v_mov_b64 {V2(vO(0,0)+r)}, 0")
    for r in range(4): A(f"v_accvgpr_write_b32 a{aONE+r}, s33")
    for r in range(12): A(f"v_accvgpr_write_b32 a{aL(0)+r}, 0")
    steps = {p: build_step(cfg, p) for p in (0, 1)}
    late = steps[0][2]
    exps0, cvts0 = sm_ops(0)
    A(f"s_waitcnt vmcnt({cfg.lead})")
    A("s_barrier")
    issue(4)
    for kb in range(4):
        if kb == 3: A("s_waitcnt lgkmcnt(6)")
        for s in range(4): A(k_read(16 * kb + 4 * s, vKB, kb, s))
    for j in range(3):
        A(f"s_waitcnt vmcnt({cfg.lead})")
        for s in range(4):
            A(f"ds_read_b128 {V4(vQ(j,s))}, v{vRD} offset:{j * 4 * BS + s * 256}")
        issue(4)
        for s in range(4):
            A(f"s_waitcnt lgkmcnt({3 - s})")
            q = vQ(j, s)
            for r in range(4):
                A(f"v_lshlrev_b32 v{t+2*r}, 16, v{q+r}")
                A(f"v_and_b32 v{t+2*r+1}, 0xffff0000, v{q+r}")
            for r in range(4): A(f"v_pk_mul_f32 {V2(t+2*r)}, {V2(t+2*r)}, s[34:35]")
            for r in range(4): A(f"v_cvt_pk_bf16_f32 v{q+r}, v{t+2*r}, v{t+2*r+1}")
        if j == 2 and cfg.st1 == 0: stamp(cfg, A, 1)
        A("s_nop 1")
        for kb in range(4):
            for s in range(4):
                d = vS(kb, j)
                A(f"{MF} {V4(d)}, {A4(16 * kb + 4 * s)}, {V4(vQ(j,s))}, {'0' if s == 0 else V4(d)}")
        s0 = vS(0, j)
        A(f"v_max3_f32 v{t}, v{s0}, v{s0+1}, v{s0+2}")
        A(f"v_max_f32 v{t}, v{t}, v{s0+3}")
        xmax(A, [t], [t + 1])
        for r in range(4): A(f"v_sub_f32 v{vNM(j)+r}, 0, v{t}")
        for kb in range(4):
            for r in range(4): A(f"v_sub_f32 v{vS(kb,j)+r}, v{vS(kb,j)+r}, v{t}")
        for n, (x, kb, jj) in enumerate(exps0):
            if jj == j and ("e", n) not in late: A(x)
        A("s_nop 0")
        for n, (x, kb, jj) in enumerate(cvts0):
            if jj == j and ("c", n) not in late: A(x)
    assert npc[0] == 4 * 5 + cfg.lead
    for r in range(0, 24, 2): A(f"v_mov_b64 {V2(vP(1,0,0)+r)}, 0")
    for r in range(16): A(f"v_accvgpr_write_b32 a{aF(1,0)+r}, 0")
    A(f"v_add_u32 v{vRD}, s{sRD}, v{vKB}")
    if cfg.ramp: A(f"s_mov_b32 s72, {cfg.ramp[0]}")
    if cfg.hold: A(f"s_mov_b32 s72, {cfg.hold[1]}")
    if cfg.early:
        code = sum((cfg.lead - k) << (2 * n + 2) for n, k in enumerate(cfg.early))
        assert all(0 <= cfg.lead - k <= 3 for k in cfg.early) and code < 1 << 64
        A(f"s_mov_b32 s48, {code & 0xffffffff:#x}"); A(f"s_mov_b32 s49, {code >> 32:#x}")
    carried = steps[0][3]
    for y in carried: A(y)
    stamp(cfg, A, 2)
    pro = L[code0:]
    odd, even, last = [], [], []
    emit_slots(cfg, steps[0][0], even.append)
    sl1 = steps[1][0]
    npieces = 4 * (4 + 2 * 14 + 1) + cfg.lead
    nv = sum(1 for p in range(npieces) if group(p // 4) == "V") + sum(1 for y in carried if y.startswith(f"s_add_u32 s{sV},"))
    sl1[-1].scalar.append(f"s_cmp_lt_u32 s{sV}, {(nv - 1) * 4096}")
    emit_slots(cfg, sl1, odd.append)
    stubs = []
    for body in (even, odd):
        out = []
        for x in body:
            if x.startswith("@early"):
                loc = int(x.split()[1])
                if cfg.early:
                    out += ["s_lshr_b64 s[48:49], s[48:49], 2", f"s_cbranch_scc1 L_early{loc}", f"L_back{loc}:"]
                    stubs += [f"L_early{loc}:", "s_and_b32 s33, s48, 3"]
                    for n in range(1, 4):
                        stubs += [f"s_cmp_lt_u32 s33, {n}", f"s_cbranch_scc1 L_back{loc}", f"s_waitcnt vmcnt({max(0, cfg.lead - n)})"]
                    stubs.append(f"s_branch L_back{loc}")
            else:
                out.append(x)
        body[:] = out
    if stubs:
        A("s_branch L_loop")
        L.extend(stubs)
    A(".p2align 6")
    A("L_loop:")
    L.extend(even)
    L.extend(odd)
    A("s_cbranch_scc1 L_loop")
    tail0 = len(L)
    L.extend(ts(cfg, 0))
    skip = list(carried)
    for p in range(npieces, 140):
        pre, ld = dma_piece(cfg, p)
        if p >= 136 and cfg.lead <= 4:
            pre = [[y.replace(f"s{sK}", f"s{sV}") for y in r] for r in pre]
            ld = ld.replace(SRD_K, SRD_V).replace(f"s{sK} ", f"s{sV} ")
        for r in pre:
            for y in r:
                if skip and y == skip[0]: skip.pop(0)
                else: A(y)
        skip = []
        if not cfg.nodma: A(ld)
    pstep = build_step(cfg, 0, peeled=(8, 4))
    emit_slots(cfg, pstep[0], A)
    stamp(cfg, A, 3)
    exps1, cvts1 = sm_ops(1)
    rest = [exps1[n][0] for k, n in pstep[2] if k == "e"] + [cvts1[n][0] for k, n in pstep[2] if k == "c"]
    t = vS(0, 0)
    x = vNM(0)
    rest += [f"v_accvgpr_read_b32 v{x+1+n}, a{aADDR+n}" for n in range(5)]
    rl = lambda j: t + 4 + 4 * j
    ob = vP(0, 0, 0)
    def recip_ops(check):
        o = [f"v_accvgpr_read_b32 v{t+j}, a{aL(j)}" for j in range(3)]
        if check:
            o += [f"v_add_f32 v{t+3}, v{t}, v{t+1}", f"v_add_f32 v{t+3}, v{t+3}, v{t+2}", f"v_cmp_ngt_f32 vcc, s{sTHR}, v{t+3}"]
        o += [f"v_rcp_f32 v{t+j}, v{t+j}" for j in range(3)]
        d = [f"ds_write_b32 v{vLW}, v{t+j} offset:{LOFF + 64 * j}" for j in range(3)]
        d += [f"ds_read_b128 {V4(rl(j))}, v{vLR} offset:{LOFF + 64 * j}" for j in range(3)]
        return o, d
    def scale_ops(j, packed):
        if packed:
            return [f"v_pk_mul_f32 {V2(vO(j,b)+h)}, {V2(vO(j,b)+h)}, {V2(rl(j)+h)}" for h in (0, 2) for b in range(8)]
        return [f"v_mul_f32 v{vO(j,b)+r}, v{vO(j,b)+r}, v{rl(j)+r}" for r in range(4) for b in range(8)]
    def wreg(j, r): return t + 16 + 4 * ((j * 4 + r) % 8)
    def cvt_ops(j, r):
        return [f"v_cvt_pk_bf16_f32 v{wreg(j,r)+h}, v{vO(j,2*h)+r}, v{vO(j,2*h+1)+r}" for h in range(4)]
    def oreg(j, r): return (ob + (j * 4 + r) * 4) if j < 1 else (vQ(0, 0) + (j * 4 + r) * 4)
    def lds_ops(j, r):
        o = (j * 4 + r) * ESTR
        return [f"ds_write_b128 v{vEW}, {V4(wreg(j,r))} offset:{o}",
                f"ds_read_b64_tr_b16 {V2(oreg(j,r))}, v{vER} offset:{o}",
                f"ds_read_b64_tr_b16 {V2(oreg(j,r)+2)}, v{vER} offset:{o + 64}"]
    def store_op(j, r):
        off = f" offset:{r * 256}" if r else ""
        return f"buffer_store_dwordx4 {V4(oreg(j,r))}, v{vOST}, {SRD_O}, s{sQ+j} offen{off} {cfg.stflags}".rstrip()
    def last_order(j):
        bs = range(8) if j % 2 == 0 else range(7, -1, -1)
        out = []
        for n, b in enumerate(bs):
            out += [(b, k) for k in ([0, 1] if n % 2 == 0 else [1, 0])]
        return out
    def aV(b, k): return aLAST + 8 * b + 4 * k
    def last_slots(j):
        return [Slot(f"{MF} {V4(vO(j,b))}, {V4(vP(1,j,k))}, {A4(aV(b,k))}, {V4(vO(j,b))}", ("L", b, k)) for b, k in last_order(j)]
    head = pv_group(3, 1, 0) + sum_group(1) + last_slots(0)
    head[0].pre = ts(cfg, 1) + ["s_waitcnt lgkmcnt(4)"]
    head[18].pre = ts(cfg, 3)
    head[0].scalar.append(f"s_mul_i32 s{sQ}, s{sW}, 12288")
    head[1].scalar.append(f"s_add_u32 s{sQ+1}, s{sQ}, 4096")
    head[2].scalar.append(f"s_add_u32 s{sQ+2}, s{sQ}, 8192")
    q = 0
    while rest:
        c = 8 if "v_exp" in rest[0] else 4
        if head[q].cap() >= c: head[q].valu.append(rest.pop(0))
        else: q += 1
    assert q < 10
    head[5].scalar.append("s_waitcnt lgkmcnt(0)")
    rdpos = list(range(max(q + 1, 6), max(q + 1, 6) + 16))
    for pos, (b, k) in zip(rdpos, last_order(0)):
        head[pos].ds += v_read(aV(b, k), vRD, b, k)
    head[rdpos[0]].pre = ["s_waitcnt vmcnt(0)", "s_barrier"] + ts(cfg, 2)
    if cfg.st1 == 1 and cfg.stamps: head[rdpos[0]].pre.append("s_memrealtime s[52:53]")
    for pos in range(rdpos[0], 33):
        issued = sum(1 for p2 in rdpos if p2 < pos)
        n = pos - 17
        assert issued > n
        allow = 2 * issued if n < 0 else 2 * (issued - n - 1)
        if n >= 0 or allow > 12: head[pos].scalar.append(f"s_waitcnt lgkmcnt({min(allow, 12)})")
    rv, rdd = recip_ops(True)
    q = max(rdpos[-1] + 1, 22)
    while rv:
        c = 8 if "v_rcp" in rv[0] else 4
        if 8 - sum(8 if "v_rcp" in y else 4 for y in head[q].valu) >= c: head[q].valu.append(rv.pop(0))
        else: q += 1
    assert q <= 32, q
    emit_slots(cfg, head[:q + 1], A)
    hrest = head[q + 1:]
    for sl in hrest:
        sl.scalar = [("s_waitcnt lgkmcnt(0)" if y.startswith("s_waitcnt") else y) for y in sl.scalar]
    body = hrest + last_slots(1) + last_slots(2)
    nh = len(hrest)
    body[0].scalar = ["s_waitcnt lgkmcnt(0)"]
    for sl in body[1:nh]: sl.scalar = []
    body[0].ds += rdd[0:3]; body[1].ds += rdd[3:6]
    first = max(nh + 1, 6)
    body[2].scalar.append("s_branch L_slow" if cfg.force_slow else "s_cbranch_vccnz L_slow")
    body[first].scalar.append("s_waitcnt lgkmcnt(0)")
    rows = [(j, r) for j in range(3) for r in range(4)]
    span = (len(body) - first) / 8.0
    for n in range(8):
        j, r = rows[n]
        a0, a1 = first + int(round(n * span)), first + int(round((n + 1) * span))
        if j == 1: a0 = max(a0, nh + 17)
        v = scale_ops(j, False)[8 * r:8 * r + 8]
        if j == 1: v.reverse()
        v += cvt_ops(j, r)
        for k, y in enumerate(v): body[a0 + k * (a1 - a0) // 12].valu.append(y)
        if n >= 1: body[a0].ds += lds_ops(*rows[n - 1])
        if n >= 2:
            body[a0 + 1].scalar.append("s_waitcnt lgkmcnt(3)")
            body[a0 + 1].ds.append(store_op(*rows[n - 2]))
    body[first + 1].pre = ts(cfg, 4)
    body[nh + 16].pre = ts(cfg, 5)
    mark = len(L)
    emit_slots(cfg, body, A)
    slow_at = next(n for n in range(mark, len(L)) if "L_slow" in L[n]) + 1
    if cfg.st1 == 2: stamp(cfg, A, 1)
    L.extend(ts(cfg, 6))
    for y in lds_ops(1, 3): A(y)
    A("s_waitcnt lgkmcnt(3)"); A(store_op(1, 2))
    sc = scale_ops(2, True)
    for y in sc[0:8] + cvt_ops(2, 0): A(y)
    A("s_waitcnt lgkmcnt(0)"); A(store_op(1, 3))
    for y in lds_ops(2, 0) + cvt_ops(2, 1): A(y)
    for y in lds_ops(2, 1) + sc[8:16] + cvt_ops(2, 2): A(y)
    A("s_waitcnt lgkmcnt(3)"); A(store_op(2, 0))
    for y in lds_ops(2, 2) + cvt_ops(2, 3): A(y)
    A("s_waitcnt lgkmcnt(3)"); A(store_op(2, 1))
    for y in lds_ops(2, 3): A(y)
    A("s_waitcnt lgkmcnt(3)"); A(store_op(2, 2))
    A("s_waitcnt lgkmcnt(0)"); A(store_op(2, 3))
    L.extend(ts(cfg, 7))
    A("L_fin:")
    if cfg.stamps:
        stamp(cfg, A, 4)
        A("s_waitcnt vmcnt(0)")
        stamp(cfg, A, 5)
        A("s_mov_b32 s42, 0x100000"); A("s_mov_b32 s43, 0x20000")
        A("s_getreg_b32 s62, hwreg(HW_REG_XCC_ID)")
        A("s_waitcnt lgkmcnt(0)")
        for n in range(6): A(f"v_mov_b32 v{12+n}, s{50+2*n}")
        A("s_sub_u32 s66, s66, s64"); A("v_mov_b32 v18, s62"); A("v_mov_b32 v19, s66")
        A(f"s_lshl_b32 s37, s2, 2"); A(f"s_add_u32 s37, s37, s{sW}"); A("s_lshl_b32 s37, s37, 5")
        A("v_mov_b32 v10, s37")
        A(f"buffer_store_dwordx4 v[12:15], v10, {SRD_WS}, 0 offen")
        A(f"buffer_store_dwordx4 v[16:19], v10, {SRD_WS}, 0 offen offset:16")
        if cfg.tst:
            for n in range(8): A(f"v_mov_b32 v{20+n}, s{76+2*n}")
            A("s_mov_b32 s37, 0x10000")
            A(f"buffer_store_dwordx4 v[20:23], v10, {SRD_WS}, s37 offen")
            A(f"buffer_store_dwordx4 v[24:27], v10, {SRD_WS}, s37 offen offset:16")
    A("L_end:")
    A("s_endpgm")
    tail = L[tail0:]
    slow0 = len(L)
    A("L_slow:")
    A("s_waitcnt vmcnt(0) lgkmcnt(0)")
    A("s_nop 7")
    vM, vAL, vAT, vMX = vP(1, 0, 0), vP(1, 0, 0) + 4, vP(1, 0, 0) + 8, vS(2, 0)
    HALF = 8 * BS
    A("s_lshl_b32 s39, s2, 18")
    A("s_add_u32 s16, s6, s39"); A("s_addc_u32 s17, s7, 0")
    A("s_mov_b32 s18, 262144"); A("s_mov_b32 s22, 262144")
    A(f"s_lshl_b32 s38, s{sW}, 10")
    A(f"v_subrev_u32 v{vDMA}, s38, v{vDMA}")
    A(f"v_add_u32 v{vKB}, s{sPRIV}, v{vKB}")
    A(f"v_add_u32 v{vVB}, s{sPRIV}, v{vVB}")
    for r in range(0, 96, 2): A(f"v_mov_b64 {V2(vO(0,0)+r)}, 0")
    for r in range(12): A(f"v_accvgpr_write_b32 a{aL(0)+r}, 0")
    for j in range(3): A(f"v_mov_b32 v{vM+j}, 0xff7fffff")
    A(f"s_mov_b32 s{sK}, 0")
    slowl0 = len(L)
    A("L_slow_loop:")
    for srd, base in ((SRD_K, 0), (SRD_V, HALF)):
        for a in range(8):
            A(f"s_add_u32 m0, s{sPRIV}, {base + a * BS}")
            A(f"s_add_u32 s38, s{sK}, {a * 1024}")
            A(f"buffer_load_dwordx4 v{vDMA}, {srd}, s38 offen lds")
    A("s_waitcnt vmcnt(0)")
    for kb in range(2):
        for s in range(4): A(k_read(16 * kb + 4 * s, vKB, kb, s))
    A("s_waitcnt lgkmcnt(0)")
    for b in range(8):
        for y in v_read(32 + 4 * b, vVB, b, 0, HALF): A(y)
        if b == 3: A("s_waitcnt lgkmcnt(0)")
    for kb in range(2):
        for j in range(3):
            for s in range(4):
                d = vS(kb, j)
                A(f"{MF} {V4(d)}, {A4(16 * kb + 4 * s)}, {V4(vQ(j,s))}, {'0' if s == 0 else V4(d)}")
    A("s_nop 7")
    for j in range(3):
        s0, s1 = vS(0, j), vS(1, j)
        A(f"v_max3_f32 v{vMX+j}, v{s0}, v{s0+1}, v{s0+2}")
        A(f"v_max3_f32 v{vMX+j}, v{vMX+j}, v{s0+3}, v{s1}")
        A(f"v_max3_f32 v{vMX+j}, v{vMX+j}, v{s1+1}, v{s1+2}")
        A(f"v_max3_f32 v{vMX+j}, v{vMX+j}, v{s1+3}, v{vM+j}")
    xmax(A, [vMX + j for j in range(3)], [vMX + 4 + j for j in range(3)])
    for j in range(3): A(f"v_sub_f32 v{vAL+j}, v{vM+j}, v{vMX+j}")
    for j in range(3): A(f"v_exp_f32 v{vAL+j}, v{vAL+j}")
    for j in range(3): A(f"v_mov_b32 v{vM+j}, v{vMX+j}")
    A("s_waitcnt lgkmcnt(0)")
    for j in range(3): A(f"ds_write_b32 v{vLW}, v{vAL+j} offset:{64 * j}")
    A("s_waitcnt lgkmcnt(0)")
    for j in range(3): A(f"ds_read_b128 {V4(vAT + 4 * j)}, v{vLR} offset:{64 * j}")
    for j in range(3):
        for r in range(4):
            A(f"v_accvgpr_read_b32 v{vMX+8}, a{aL(j)+r}")
            A(f"v_mul_f32 v{vMX+8}, v{vMX+8}, v{vAL+j}")
            A(f"v_accvgpr_write_b32 a{aL(j)+r}, v{vMX+8}")
    for kb in range(2):
        for j in range(3):
            for r in range(4): A(f"v_sub_f32 v{vS(kb,j)+r}, v{vS(kb,j)+r}, v{vM+j}")
    for y, kb, j in exps0:
        if kb < 2: A(y)
    A("s_waitcnt lgkmcnt(0)")
    for y, kb, j in cvts0:
        if kb < 2: A(y)
    for j in range(3):
        for b in range(8):
            for r in range(4): A(f"v_mul_f32 v{vO(j,b)+r}, v{vO(j,b)+r}, v{vAT+4*j+r}")
    A("s_nop 1")
    for j in range(3): A(f"{MF} {A4(aL(j))}, {A4(aONE)}, {V4(vP(0,j,0))}, {A4(aL(j))}")
    for b in range(8):
        for j in range(3):
            A(f"{MF} {V4(vO(j,b))}, {V4(vP(0,j,0))}, {A4(32 + 4 * b)}, {V4(vO(j,b))}")
    A(f"s_add_u32 s{sK}, s{sK}, 8192")
    A(f"s_cmp_lt_u32 s{sK}, 262144")
    A("s_cbranch_scc1 L_slow_loop")
    slowl1 = len(L)
    A("s_nop 7")
    rv, rdd = recip_ops(False)
    for y in rv + ["s_nop 0"] + rdd + ["s_waitcnt lgkmcnt(0)"]: A(y)
    A(f"s_add_u32 s{sQ+1}, s{sQ}, 4096"); A(f"s_add_u32 s{sQ+2}, s{sQ}, 8192")
    for j in range(3):
        for y in scale_ops(j, True): A(y)
        for r in range(4):
            for y in cvt_ops(j, r) + lds_ops(j, r): A(y)
        A("s_waitcnt lgkmcnt(0)")
        for r in range(4): A(store_op(j, r))
    A("s_branch L_fin")
    errs = check_hazards(pro + even + odd + even + odd + tail, "fast")
    errs += check_hazards(L[tail0:slow_at] + L[slow0:slowl1] + L[slowl0:], "slow")
    errs += check_lgkm(pro + even + odd + even + odd + tail, "fast")
    errs += check_lgkm(L[tail0:slow_at] + L[slow0:slowl1] + L[slowl0:], "slow")
    if errs:
        raise RuntimeError("\n".join(errs))
    A('.section .rodata,"a"')
    A(".p2align 6")
    A(f".amdhsa_kernel {NAME}")
    A(f"  .amdhsa_next_free_vgpr {256 + NAGPR}")
    A("  .amdhsa_next_free_sgpr 102")
    A("  .amdhsa_accum_offset 256")
    A("  .amdhsa_group_segment_fixed_size 0")
    A("  .amdhsa_kernarg_size 48")
    A("  .amdhsa_user_sgpr_count 2")
    A("  .amdhsa_user_sgpr_kernarg_segment_ptr 1")
    A("  .amdhsa_system_sgpr_workgroup_id_x 1")
    A("  .amdhsa_float_denorm_mode_32 3")
    A(".end_amdhsa_kernel")
    out = []
    for l in L:
        out.append(l if (l.endswith(":") or l.startswith((".", ";", " "))) else "    " + l)
    return "\n".join(out) + "\n"

if __name__ == "__main__":
    kw = {}
    for a in sys.argv[1:]:
        k, v = a.split("=", 1)
        try: v = eval(v)
        except Exception: pass
        kw[k] = v
    sys.stdout.write(gen(Cfg(**kw)))
```

```python
import math, struct, sys
from asmlib import Ins, check_hazards, check_lgkm

NAME = "standalone__mha_softmax__near_ridge_kernel"
BS = 1056
TILE = 16 * BS
PRIVSZ = TILE
ESTR = 1280
LOFF = 12 * ESTR

def f2u(x): return struct.unpack("<I", struct.pack("<f", x))[0]
C_SCALE = f2u(math.log2(math.e) / math.sqrt(128.0))
L_MAX = f2u(2.0 ** 40)

vDMA, vKB, vVB, vRD = 0, 1, 2, 3
def vO(j, b): return 4 + (j * 8 + b) * 4
def vS(kb, j): return 100 + (kb * 3 + j) * 4
def vP(par, j, k): return 148 + par * 24 + (j * 2 + k) * 4
def vNM(j): return 196 + j * 4
def vQ(j, s): return 208 + (j * 4 + s) * 4
def aF(st, i): return st * 16 + i * 4
aONE = 64
def aL(j): return 68 + j * 4
aADDR = 80
aLAST = 88
NAGPR = 152
def V4(r): return f"v[{r}:{r+3}]"
def V2(r): return f"v[{r}:{r+1}]"
def A4(r): return f"a[{r}:{r+3}]"
def A2(r): return f"a[{r}:{r+1}]"
sW, sWR, sPRIV, sK, sV, sRD, sTHR, sWEND, sW0, sQ = 3, 28, 29, 30, 31, 32, 36, 44, 45, 37
sALT = 46
SRD_Q, SRD_K, SRD_V, SRD_O, SRD_WS = "s[12:15]", "s[16:19]", "s[20:23]", "s[24:27]", "s[40:43]"
MF = "v_mfma_f32_16x16x32_bf16"

class Cfg:
    lead = 4
    ns = 5
    ldflags = "nt"
    stflags = "nt"
    dma_slots = (1, 13, 25, 37)
    rd_slots = (0, 2, 4, 6)
    early = ()
    stamps = False
    st1 = 0
    force_slow = False
    enc = None
    encwg = None
    tst = False
    pad = 0
    nodma = False
    hold = None
    ramp = None
    def __init__(self, **kw):
        for k, v in kw.items():
            assert hasattr(Cfg, k), k
            setattr(self, k, v)
        assert self.ns >= max(5, 3 + (self.lead + 3) // 4) and self.lead <= 8
        self.priv = self.ns * TILE
        self.lds = self.priv + 4 * PRIVSZ
        assert self.lds <= 163840

def group(g):
    if g == 0: return "K"
    if g <= 3: return "Q"
    return "K" if (g - 4) % 2 == 0 else "V"

def dma_piece(cfg, p):
    g, i = divmod(p, 4)
    kind = group(g)
    pre = []
    if kind == "Q":
        n = (g - 1) * 4 + i
        pre.append([f"s_add_u32 m0, s{sPRIV}, {n * BS}"])
        pre.append([f"s_add_u32 s{sQ}, s{sQ}, 1024"])
        return pre, f"buffer_load_dwordx4 v{vDMA}, {SRD_Q}, s{sQ} offen {cfg.ldflags} lds".replace("  ", " ")
    so = sK if kind == "K" else sV
    if i == 0:
        pre.append([f"s_add_u32 s{sWR}, s{sWR}, {TILE}"])
        pre.append([f"s_cmp_eq_u32 s{sWR}, s{sWEND}", f"s_cselect_b32 s{sWR}, s{sW0}, s{sWR}"])
    pre.append([f"s_add_u32 m0, s{sWR}, {4 * i * BS}"] if i else [f"s_mov_b32 m0, s{sWR}"])
    pre.append([f"s_add_u32 s{so}, s{so}, 4096"])
    if kind == "K" and i == 0 and cfg.lead > 4:
        pre.append([f"s_cmp_eq_u32 s{sK}, 262144", f"s_cselect_b64 s[16:17], s[{sALT}:{sALT+1}], s[16:17]"])
    srd = SRD_K if kind == "K" else SRD_V
    return pre, f"buffer_load_dwordx4 v{vDMA}, {srd}, s{so} offen {cfg.ldflags} lds".replace("  ", " ")

def k_read(dst, base, kb, s, off=0):
    return f"ds_read_b128 {A4(dst)}, v{base} offset:{off + kb * 4 * BS + s * 256}"

def v_read(dst, base, b, k, off=0):
    o = off + 8 * k * BS + (b >> 1) * 256 + (b & 1) * 32
    return [f"ds_read_b64_tr_b16 {A2(dst)}, v{base} offset:{o}",
            f"ds_read_b64_tr_b16 {A2(dst + 2)}, v{base} offset:{o + 4 * BS}"]

def qk_order(kb):
    js = [0, 1, 2] if kb % 2 == 0 else [2, 1, 0]
    out = []
    for n, j in enumerate(js):
        up = (kb * 3 + n) % 2 == 0
        out += [(j, s) for s in ([0, 1, 2, 3] if up else [3, 2, 1, 0])]
    return out

def pv_order(g):
    out = []
    for bb in range(2):
        b = 2 * g + bb
        js = [0, 1, 2] if b % 2 == 0 else [2, 1, 0]
        for n, j in enumerate(js):
            up = (b * 3 + n) % 2 == 0
            out += [(b, j, k) for k in ([0, 1] if up else [1, 0])]
    return out

class Slot:
    def __init__(self, mfma, frag=None):
        self.mfma, self.frag = mfma, frag
        self.pre, self.scalar, self.ds, self.dma, self.valu = [], [], [], [], []
        self.dsfrag = []
    def cap(self):
        return 8 - 4 * len(self.ds) - 8 * len(self.dma) - 4 * max(0, len(self.scalar) - 1) - sum(8 if "v_exp" in v else 4 for v in self.valu)

def qk_group(kb, st):
    sl, seen = [], set()
    for j, s in qk_order(kb):
        d = vS(kb, j)
        c = V4(d) if j in seen else V4(vNM(j))
        seen.add(j)
        sl.append(Slot(f"{MF} {V4(d)}, {A4(aF(st, s))}, {V4(vQ(j, s))}, {c}", (st, s)))
    return sl

def pv_group(g, st, par):
    return [Slot(f"{MF} {V4(vO(j, b))}, {V4(vP(par, j, k))}, {A4(aF(st, (b & 1) * 2 + k))}, {V4(vO(j, b))}", (st, (b & 1) * 2 + k))
            for b, j, k in pv_order(g)]

def sum_group(par):
    return [Slot(f"{MF} {A4(aL(j))}, {A4(aONE)}, {V4(vP(par, j, k))}, {A4(aL(j))}") for j in range(3) for k in range(2)]

def first_use(slots):
    out = []
    for s in slots:
        if s.frag not in out: out.append(s.frag)
    return out

def k_reads_for(kb, st):
    return [([k_read(aF(st, fr[1]), vRD, kb, fr[1])], fr) for fr in first_use(qk_group(kb, st))]

def v_reads_for(g, st):
    return [(v_read(aF(st, fr[1]), vRD, 2 * g + (fr[1] >> 1), fr[1] & 1), fr) for fr in first_use(pv_group(g, st, 0))]

def sm_ops(par):
    exps, cvts = [], []
    for kb in range(4):
        js = [0, 1, 2] if kb % 2 == 0 else [2, 1, 0]
        for j in js:
            s = vS(kb, j)
            for h in range(2):
                exps += [(f"v_exp_f32 v{s+2*h}, v{s+2*h}", kb, j), (f"v_exp_f32 v{s+2*h+1}, v{s+2*h+1}", kb, j)]
                cvts.append((f"v_cvt_pk_bf16_f32 v{vP(par, j, kb >> 1) + 2 * (kb & 1) + h}, v{s+2*h}, v{s+2*h+1}", kb, j))
    return exps, cvts

def ring_advance(cfg, base):
    return ([[f"s_add_u32 s{sRD}, s{sRD}, {TILE}"], [f"s_cmp_eq_u32 s{sRD}, {cfg.ns * TILE}", f"s_cselect_b32 s{sRD}, 0, s{sRD}"]],
            f"v_add_u32 v{vRD}, s{sRD}, v{base}")

def build_step(cfg, par, peeled=None):
    groups = [pv_group(3, 1, par ^ 1), qk_group(0, 0), qk_group(1, 1), qk_group(2, 0), qk_group(3, 1),
              sum_group(par), pv_group(0, 0, par), pv_group(1, 1, par), pv_group(2, 0, par)]
    reads = [k_reads_for(0, 0), k_reads_for(1, 1), k_reads_for(2, 0), k_reads_for(3, 1), v_reads_for(0, 0),
             [], v_reads_for(1, 1), v_reads_for(2, 0), v_reads_for(3, 1)]
    slots, gs = [], []
    for g, rd in zip(groups, reads):
        gs.append(len(slots))
        for pos, (ins, fr) in zip(cfg.rd_slots, rd):
            g[pos].ds += ins
            g[pos].dsfrag += [fr] * len(ins)
        slots += g
    n = len(slots)
    issued = []
    done = -1
    waits = {}
    for rep in range(2):
        for i, s in enumerate(slots):
            if s.frag is not None:
                need = max((q for q, fr in enumerate(issued) if fr == s.frag), default=-1)
                if need > done:
                    nxt = slots[(i + 1) % n].frag
                    need = max(need, max((q for q, fr in enumerate(issued) if fr == nxt), default=-1)) if nxt else need
                    prev = slots[i - 1]
                    total = len(issued) - len(prev.ds)
                    if i in (gs[0], gs[4]): total = len(issued)
                    assert need < total
                    if rep == 1: waits[i] = total - 1 - need
                    done = need
            issued += s.dsfrag
    for i, c in waits.items():
        if i not in (gs[0], gs[4]):
            slots[i - 1].scalar.append(f"s_waitcnt lgkmcnt({c})")
    for i in (gs[0], gs[4]):
        p = cfg.pad
        while p > 0:
            slots[i].pre.append(f"s_nop {min(p, 16) - 1}"); p -= 16
        if cfg.ramp:
            lab = f"L_ramp_{par}_{i}"
            slots[i].pre += ["s_cselect_b32 s75, 1, 0", "s_mov_b32 s74, s72", f"{lab}:", "s_sub_i32 s74, s74, 1", "s_cmp_gt_i32 s74, 0", f"s_cbranch_scc1 {lab}",
                             f"s_sub_i32 s72, s72, {cfg.ramp[1]}", f"s_max_i32 s72, s72, {cfg.ramp[2]}", "s_cmp_lg_u32 s75, 0"]
        if cfg.hold:
            lab = f"L_hold_{par}_{i}"
            slots[i].pre += ["s_cselect_b32 s75, 1, 0", "s_sub_i32 s72, s72, 1", "s_cmp_lt_i32 s72, 0", f"s_cbranch_scc1 {lab}_x", f"s_mov_b32 s74, {cfg.hold[0]}",
                             f"{lab}:", "s_sub_i32 s74, s74, 1", "s_cmp_gt_i32 s74, 0", f"s_cbranch_scc1 {lab}", f"{lab}_x:", "s_cmp_lg_u32 s75, 0"]
        lg = f" lgkmcnt({waits[i]})" if i in waits else ""
        if peeled:
            slots[i].pre = [f"s_waitcnt vmcnt({peeled[0 if i == gs[0] else 1]}){lg}", "s_barrier"]
        else:
            slots[i].pre += [f"@early {par * 2 + (0 if i == gs[0] else 1)}", f"s_waitcnt vmcnt({cfg.lead}){lg}", "s_barrier"]
    for ph, start in enumerate((gs[0], gs[4])):
        for m, off in enumerate(cfg.dma_slots):
            pre, ld = dma_piece(cfg, 4 * (4 + ph + 1) + cfg.lead + m + 8)
            i = start + off
            assert not slots[i].ds and not slots[i].dma, (i, off)
            slots[i].dma.append(ld)
            slots[i].dmapre = pre
    dmas = [i for i, s in enumerate(slots) if s.dma]
    gaps = []
    for q, i in enumerate(dmas):
        prev = dmas[q - 1] - (n if q == 0 else 0)
        gaps.append([prev + 1, i, list(slots[i].dmapre)])
    lastrd = {gs[4]: gs[3] + cfg.rd_slots[-1], n: gs[8] + cfg.rd_slots[-1]}
    for start, base, lo in ((gs[4], vVB, 0), (n, vKB, gs[4])):
        runs, va = ring_advance(cfg, base)
        at = max(i for i in range(lastrd[start] + 1, start) if slots[i].cap() >= 4 and i < start - 1)
        slots[at].valu.append(va)
        def room(g):
            return sum(1 for x in range(g[0], g[1] + 1) if not slots[x % n].scalar) - sum(len(r) for r in g[2])
        g = max((g for g in gaps if g[0] >= lo and g[1] < at), key=room)
        g[2] = runs + g[2]
    carried = []
    for lo, hi, runs in gaps:
        flat = [(x, len(r) == 2 and k == 1) for r in runs for k, x in enumerate(r)]
        free = [x for x in range(lo, hi + 1) if not slots[x % n].scalar and x != -1]
        if len(free) < len(flat):
            free = sorted(free + [hi] * (len(flat) - len(free)))
        tgt = free[-len(flat):]
        for k, (x, second) in enumerate(flat):
            if second and (tgt[k - 1] < 0 <= tgt[k] or tgt[k - 1] < gs[4] <= tgt[k]): tgt[k] = tgt[k - 1]
            slots[tgt[k] % n].scalar.append(x)
            if tgt[k] < 0: carried.append(x)
    chain_end, chain_start = {}, {}
    for kb in range(4):
        for q, (j, s) in enumerate(qk_order(kb)):
            chain_end[(kb, j)] = gs[1 + kb] + q
            chain_start.setdefault((kb, j), gs[1 + kb] + q)
    start = chain_end[(0, 0)] + 8
    ops = {p: sm_ops(p) for p in (0, 1)}
    ne = nc = 0
    late = []
    for t in range(start, start + n):
        i, wrapped = t % n, t >= n
        sl = slots[i]
        exps, cvts = ops[par if wrapped else par ^ 1]
        ne0 = ne
        if sl.cap() >= 8 and ne < 48 and t >= chain_end[exps[ne][1:]] + 5:
            sl.valu.append(exps[ne][0])
            if wrapped: late.append(("e", ne))
            ne += 1
        else:
            while sl.cap() >= 4 and nc < 24 and 2 * nc + 2 <= ne0:
                assert t < n + chain_start[cvts[nc][1:]] and t < n + gs[5] - 1
                sl.valu.append(cvts[nc][0])
                if wrapped: late.append(("c", nc))
                nc += 1
    assert ne == 48 and nc == 24, (ne, nc)
    if peeled:
        exps, cvts = ops[par ^ 1]
        done = set()
        late = list(late)
        for i, sl in enumerate(slots):
            wr = (f"s_add_u32 s{sWR},", f"s_cmp_eq_u32 s{sWR},", f"s_cselect_b32 s{sWR},", "s_add_u32 m0,", "s_mov_b32 m0,",
                  f"s_add_u32 s{sK},", f"s_add_u32 s{sV},", f"s_cmp_eq_u32 s{sK},", "s_cselect_b64")
            sl.scalar = [y for y in sl.scalar if not y.startswith(wr)]
            sl.dma = []
            if i >= start:
                while sl.cap() >= 4:
                    c = next((c for k, c in late if k == "c" and exps[2 * c][0] in done and exps[2 * c + 1][0] in done), None)
                    if c is None: break
                    late.remove(("c", c)); sl.valu.append(cvts[c][0])
                done |= set(sl.valu)
        for sl in slots[gs[8]:]:
            sl.valu = [f"v_add_u32 v{vRD}, s{sRD}, v{vVB}" if y.startswith(f"v_add_u32 v{vRD},") else y for y in sl.valu]
    return slots, gs, late, carried

def emit_slots(cfg, slots, A):
    for sl in slots:
        for x in sl.pre: A(x)
        A(sl.mfma)
        for x in sl.scalar + sl.ds + ([] if cfg.nodma else sl.dma) + sl.valu: A(x)

def xmax(A, regs, tmp):
    for op in ("v_permlane16_swap_b32", "v_permlane32_swap_b32"):
        for r, x in zip(regs, tmp): A(f"v_mov_b32 v{x}, v{r}")
        A("s_nop 1")
        for r, x in zip(regs, tmp): A(f"{op} v{r}, v{x}")
        for r, x in zip(regs, tmp): A(f"v_max_f32 v{r}, v{r}, v{x}")

def stamp(cfg, A, n):
    if cfg.enc is not None and (n == 0 or n in cfg.enc):
        A(f"s_memrealtime s[{50+2*n}:{51+2*n}]")
    if cfg.stamps:
        A(f"s_memrealtime s[{50+2*n}:{51+2*n}]")
        if n == 2: A("s_memtime s[64:65]")
        if n == 3: A("s_memtime s[66:67]")

def ts(cfg, n):
    return [f"s_memtime s[{76+2*n}:{77+2*n}]"] if cfg.tst else []

def gen(cfg):
    L = []
    A = L.append
    A(f"; @launch grid=(256,1,1) block=(256,1,1) lds={cfg.lds}")
    A('.amdgcn_target "amdgcn-amd-amdhsa--gfx950"')
    A(".text")
    A(f".globl {NAME}")
    A(".p2align 8")
    A(f".type {NAME},@function")
    A(f"{NAME}:")
    code0 = len(L)
    stamp(cfg, A, 0)
    A("s_cmp_ge_u32 s2, 256")
    A("s_cbranch_scc1 L_end")
    A("s_load_dwordx8 s[4:11], s[0:1], 0")
    if cfg.stamps: A("s_load_dwordx2 s[40:41], s[0:1], 40")
    t = vP(1, 0, 0)
    A(f"v_lshrrev_b32 v{t}, 6, v0")
    A(f"v_and_b32 v{t+1}, 63, v0")
    A(f"v_readfirstlane_b32 s{sW}, v{t}")
    A(f"v_and_b32 v{t+2}, 3, v0")
    A(f"v_bfe_u32 v{t+3}, v0, 2, 2")
    A(f"v_lshrrev_b32 v{t+4}, 4, v{t+1}")
    A(f"v_lshlrev_b32 v{vDMA}, 4, v{t+2}")
    A(f"v_lshl_add_u32 v{vDMA}, v{t+3}, 8, v{vDMA}")
    A(f"v_lshl_add_u32 v{vDMA}, v{t+4}, 6, v{vDMA}")
    A(f"v_lshl_add_u32 v{vDMA}, v{t}, 10, v{vDMA}")
    A("s_lshl_b32 s39, s2, 18")
    A("s_mul_i32 s38, s2, 49152")
    A(f"s_mul_i32 s{sW0}, s{sW}, {BS}")
    A(f"s_mul_i32 s{sPRIV}, s{sW}, {PRIVSZ}")
    A(f"s_mul_i32 s{sQ}, s{sW}, {12288 - 1024}")
    A(f"s_add_u32 s{sPRIV}, s{sPRIV}, {cfg.priv}")
    A(f"s_add_u32 s{sWEND}, s{sW0}, {cfg.ns * TILE}")
    A(f"s_sub_u32 s{sWR}, s{sW0}, {TILE}")
    A(f"s_sub_u32 s{sQ}, s{sQ}, 1024")
    A("s_mov_b32 s14, 49152"); A("s_mov_b32 s15, 0x20000")
    A(f"s_mov_b32 s18, {262144 + (16384 if cfg.lead > 4 else 0)}"); A("s_mov_b32 s19, 0x20000")
    A(f"s_mov_b32 s22, {262144 - (16384 if cfg.lead > 4 else 0)}"); A("s_mov_b32 s23, 0x20000")
    A("s_mov_b32 s26, 49152"); A("s_mov_b32 s27, 0x20000")
    A(f"s_mov_b32 s{sK}, -4096"); A(f"s_mov_b32 s{sV}, -4096")
    A("s_waitcnt lgkmcnt(0)")
    A("s_add_u32 s16, s6, s39"); A("s_addc_u32 s17, s7, 0")
    A("s_add_u32 s20, s8, s39"); A("s_addc_u32 s21, s9, 0")
    if cfg.lead > 4:
        A(f"s_sub_u32 s{sALT}, s20, 16384"); A(f"s_subb_u32 s{sALT+1}, s21, 0")
    A("s_add_u32 s12, s4, s38"); A("s_addc_u32 s13, s5, 0")
    npc = [0]
    def issue(n):
        for _ in range(n):
            pre, ld = dma_piece(cfg, npc[0]); npc[0] += 1
            for r in pre:
                for x in r: A(x)
            A(ld)
    issue(4 + cfg.lead)
    A("s_add_u32 s24, s10, s38"); A("s_addc_u32 s25, s11, 0")
    x = vNM(0)
    A(f"v_mov_b32 v{x}, v{t+1}")
    vEW, vER, vOST, vLW, vLR = x + 1, x + 2, x + 3, x + 4, x + 5
    addr = [f"v_lshrrev_b32 v{x+6}, 4, v{x}", f"v_and_b32 v{x+7}, 15, v{x}", f"v_and_b32 v{x+8}, 1, v{x}",
            f"v_bfe_u32 v{x+9}, v{x}, 1, 1", f"v_bfe_u32 v{x+10}, v{x}, 2, 2",
            f"v_lshlrev_b32 v{vEW}, 4, v{x}", f"v_lshl_add_u32 v{vEW}, v{x+6}, 6, v{vEW}", f"v_add_u32 v{vEW}, s{sPRIV}, v{vEW}",
            f"v_mul_u32_u24 v{vER}, 320, v{x+6}", f"v_lshl_add_u32 v{vER}, v{x+8}, 7, v{vER}", f"v_lshl_add_u32 v{vER}, v{x+10}, 4, v{vER}",
            f"v_lshl_add_u32 v{vER}, v{x+9}, 3, v{vER}", f"v_add_u32 v{vER}, s{sPRIV}, v{vER}",
            f"v_lshl_add_u32 v{vLW}, v{x+7}, 2, s{sPRIV}", f"v_lshl_add_u32 v{vLR}, v{x+6}, 4, s{sPRIV}",
            f"v_and_b32 v{x+8}, 3, v{x}", f"v_bfe_u32 v{x+9}, v{x}, 2, 1", f"v_bfe_u32 v{x+10}, v{x}, 3, 1",
            f"v_lshlrev_b32 v{vOST}, 10, v{x+6}", f"v_lshl_add_u32 v{vOST}, v{x+8}, 5, v{vOST}",
            f"v_lshl_add_u32 v{vOST}, v{x+9}, 4, v{vOST}", f"v_lshl_add_u32 v{vOST}, v{x+10}, 7, v{vOST}"]
    for y in addr: A(y)
    for n in range(5): A(f"v_accvgpr_write_b32 a{aADDR+n}, v{x+1+n}")
    A(f"v_mul_u32_u24 v{vKB}, {BS}, v{t+3}")
    A(f"v_lshl_add_u32 v{vKB}, v{t+2}, 6, v{vKB}")
    A(f"v_lshl_add_u32 v{vKB}, v{t+4}, 4, v{vKB}")
    A(f"v_mul_u32_u24 v{vVB}, {BS}, v{t+4}")
    A(f"v_lshl_add_u32 v{vVB}, v{t+3}, 6, v{vVB}")
    A(f"v_lshl_add_u32 v{vVB}, v{t+2}, 3, v{vVB}")
    A(f"v_add_u32 v{vRD}, s{sPRIV}, v{vKB}")
    A(f"s_mov_b32 s34, {C_SCALE:#x}"); A(f"s_mov_b32 s35, {C_SCALE:#x}")
    A(f"s_mov_b32 s{sTHR}, {L_MAX:#x}")
    A(f"s_mov_b32 s{sRD}, {TILE}")
    A("s_mov_b32 s33, 0x3f803f80")
    for r in range(0, 96, 2): A(f"v_mov_b64 {V2(vO(0,0)+r)}, 0")
    for r in range(4): A(f"v_accvgpr_write_b32 a{aONE+r}, s33")
    for r in range(12): A(f"v_accvgpr_write_b32 a{aL(0)+r}, 0")
    steps = {p: build_step(cfg, p) for p in (0, 1)}
    late = steps[0][2]
    exps0, cvts0 = sm_ops(0)
    A(f"s_waitcnt vmcnt({cfg.lead})")
    A("s_barrier")
    issue(4)
    for kb in range(4):
        if kb == 3: A("s_waitcnt lgkmcnt(6)")
        for s in range(4): A(k_read(16 * kb + 4 * s, vKB, kb, s))
    for j in range(3):
        A(f"s_waitcnt vmcnt({cfg.lead})")
        for s in range(4):
            A(f"ds_read_b128 {V4(vQ(j,s))}, v{vRD} offset:{j * 4 * BS + s * 256}")
        issue(4)
        for s in range(4):
            A(f"s_waitcnt lgkmcnt({3 - s})")
            q = vQ(j, s)
            for r in range(4):
                A(f"v_lshlrev_b32 v{t+2*r}, 16, v{q+r}")
                A(f"v_and_b32 v{t+2*r+1}, 0xffff0000, v{q+r}")
            for r in range(4): A(f"v_pk_mul_f32 {V2(t+2*r)}, {V2(t+2*r)}, s[34:35]")
            for r in range(4): A(f"v_cvt_pk_bf16_f32 v{q+r}, v{t+2*r}, v{t+2*r+1}")
        if j == 2 and cfg.st1 == 0: stamp(cfg, A, 1)
        A("s_nop 1")
        for kb in range(4):
            for s in range(4):
                d = vS(kb, j)
                A(f"{MF} {V4(d)}, {A4(16 * kb + 4 * s)}, {V4(vQ(j,s))}, {'0' if s == 0 else V4(d)}")
        s0 = vS(0, j)
        A(f"v_max3_f32 v{t}, v{s0}, v{s0+1}, v{s0+2}")
        A(f"v_max_f32 v{t}, v{t}, v{s0+3}")
        xmax(A, [t], [t + 1])
        for r in range(4): A(f"v_sub_f32 v{vNM(j)+r}, 0, v{t}")
        for kb in range(4):
            for r in range(4): A(f"v_sub_f32 v{vS(kb,j)+r}, v{vS(kb,j)+r}, v{t}")
        for n, (x, kb, jj) in enumerate(exps0):
            if jj == j and ("e", n) not in late: A(x)
        A("s_nop 0")
        for n, (x, kb, jj) in enumerate(cvts0):
            if jj == j and ("c", n) not in late: A(x)
    assert npc[0] == 4 * 5 + cfg.lead
    for r in range(0, 24, 2): A(f"v_mov_b64 {V2(vP(1,0,0)+r)}, 0")
    for r in range(16): A(f"v_accvgpr_write_b32 a{aF(1,0)+r}, 0")
    A(f"v_add_u32 v{vRD}, s{sRD}, v{vKB}")
    if cfg.ramp: A(f"s_mov_b32 s72, {cfg.ramp[0]}")
    if cfg.hold: A(f"s_mov_b32 s72, {cfg.hold[1]}")
    if cfg.early:
        code = sum((cfg.lead - k) << (2 * n + 2) for n, k in enumerate(cfg.early))
        assert all(0 <= cfg.lead - k <= 3 for k in cfg.early) and code < 1 << 64
        A(f"s_mov_b32 s48, {code & 0xffffffff:#x}"); A(f"s_mov_b32 s49, {code >> 32:#x}")
    carried = steps[0][3]
    for y in carried: A(y)
    stamp(cfg, A, 2)
    pro = L[code0:]
    odd, even, last = [], [], []
    emit_slots(cfg, steps[0][0], even.append)
    sl1 = steps[1][0]
    npieces = 4 * (4 + 2 * 14 + 1) + cfg.lead
    nv = sum(1 for p in range(npieces) if group(p // 4) == "V") + sum(1 for y in carried if y.startswith(f"s_add_u32 s{sV},"))
    sl1[-1].scalar.append(f"s_cmp_lt_u32 s{sV}, {(nv - 1) * 4096}")
    emit_slots(cfg, sl1, odd.append)
    stubs = []
    for body in (even, odd):
        out = []
        for x in body:
            if x.startswith("@early"):
                loc = int(x.split()[1])
                if cfg.early:
                    out += ["s_lshr_b64 s[48:49], s[48:49], 2", f"s_cbranch_scc1 L_early{loc}", f"L_back{loc}:"]
                    stubs += [f"L_early{loc}:", "s_and_b32 s33, s48, 3"]
                    for n in range(1, 4):
                        stubs += [f"s_cmp_lt_u32 s33, {n}", f"s_cbranch_scc1 L_back{loc}", f"s_waitcnt vmcnt({max(0, cfg.lead - n)})"]
                    stubs.append(f"s_branch L_back{loc}")
            else:
                out.append(x)
        body[:] = out
    if stubs:
        A("s_branch L_loop")
        L.extend(stubs)
    A(".p2align 6")
    A("L_loop:")
    L.extend(even)
    L.extend(odd)
    A("s_cbranch_scc1 L_loop")
    tail0 = len(L)
    L.extend(ts(cfg, 0))
    skip = list(carried)
    for p in range(npieces, 140):
        pre, ld = dma_piece(cfg, p)
        if p >= 136 and cfg.lead <= 4:
            pre = [[y.replace(f"s{sK}", f"s{sV}") for y in r] for r in pre]
            ld = ld.replace(SRD_K, SRD_V).replace(f"s{sK} ", f"s{sV} ")
        for r in pre:
            for y in r:
                if skip and y == skip[0]: skip.pop(0)
                else: A(y)
        skip = []
        if not cfg.nodma: A(ld)
    pstep = build_step(cfg, 0, peeled=(8, 4))
    emit_slots(cfg, pstep[0], A)
    stamp(cfg, A, 3)
    exps1, cvts1 = sm_ops(1)
    rest = [exps1[n][0] for k, n in pstep[2] if k == "e"] + [cvts1[n][0] for k, n in pstep[2] if k == "c"]
    t = vS(0, 0)
    x = vNM(0)
    rest += [f"v_accvgpr_read_b32 v{x+1+n}, a{aADDR+n}" for n in range(5)]
    rl = lambda j: t + 4 + 4 * j
    ob = vP(0, 0, 0)
    def recip_ops(check):
        o = [f"v_accvgpr_read_b32 v{t+j}, a{aL(j)}" for j in range(3)]
        if check:
            o += [f"v_add_f32 v{t+3}, v{t}, v{t+1}", f"v_add_f32 v{t+3}, v{t+3}, v{t+2}", f"v_cmp_ngt_f32 vcc, s{sTHR}, v{t+3}"]
        o += [f"v_rcp_f32 v{t+j}, v{t+j}" for j in range(3)]
        d = [f"ds_write_b32 v{vLW}, v{t+j} offset:{LOFF + 64 * j}" for j in range(3)]
        d += [f"ds_read_b128 {V4(rl(j))}, v{vLR} offset:{LOFF + 64 * j}" for j in range(3)]
        return o, d
    def scale_ops(j, packed):
        if packed:
            return [f"v_pk_mul_f32 {V2(vO(j,b)+h)}, {V2(vO(j,b)+h)}, {V2(rl(j)+h)}" for h in (0, 2) for b in range(8)]
        return [f"v_mul_f32 v{vO(j,b)+r}, v{vO(j,b)+r}, v{rl(j)+r}" for r in range(4) for b in range(8)]
    def wreg(j, r): return t + 16 + 4 * ((j * 4 + r) % 8)
    def cvt_ops(j, r):
        return [f"v_cvt_pk_bf16_f32 v{wreg(j,r)+h}, v{vO(j,2*h)+r}, v{vO(j,2*h+1)+r}" for h in range(4)]
    def oreg(j, r): return (ob + (j * 4 + r) * 4) if j < 1 else (vQ(0, 0) + (j * 4 + r) * 4)
    def lds_ops(j, r):
        o = (j * 4 + r) * ESTR
        return [f"ds_write_b128 v{vEW}, {V4(wreg(j,r))} offset:{o}",
                f"ds_read_b64_tr_b16 {V2(oreg(j,r))}, v{vER} offset:{o}",
                f"ds_read_b64_tr_b16 {V2(oreg(j,r)+2)}, v{vER} offset:{o + 64}"]
    def store_op(j, r):
        off = f" offset:{r * 256}" if r else ""
        return f"buffer_store_dwordx4 {V4(oreg(j,r))}, v{vOST}, {SRD_O}, s{sQ+j} offen{off} {cfg.stflags}".rstrip()
    def last_order(j):
        bs = range(8) if j % 2 == 0 else range(7, -1, -1)
        out = []
        for n, b in enumerate(bs):
            out += [(b, k) for k in ([0, 1] if n % 2 == 0 else [1, 0])]
        return out
    def aV(b, k): return aLAST + 8 * b + 4 * k
    def last_slots(j):
        return [Slot(f"{MF} {V4(vO(j,b))}, {V4(vP(1,j,k))}, {A4(aV(b,k))}, {V4(vO(j,b))}", ("L", b, k)) for b, k in last_order(j)]
    head = pv_group(3, 1, 0) + sum_group(1) + last_slots(0)
    head[0].pre = ts(cfg, 1) + ["s_waitcnt lgkmcnt(4)"]
    head[18].pre = ts(cfg, 3)
    head[0].scalar.append(f"s_mul_i32 s{sQ}, s{sW}, 12288")
    head[1].scalar.append(f"s_add_u32 s{sQ+1}, s{sQ}, 4096")
    head[2].scalar.append(f"s_add_u32 s{sQ+2}, s{sQ}, 8192")
    q = 0
    while rest:
        c = 8 if "v_exp" in rest[0] else 4
        if head[q].cap() >= c: head[q].valu.append(rest.pop(0))
        else: q += 1
    assert q < 10
    head[5].scalar.append("s_waitcnt lgkmcnt(0)")
    rdpos = list(range(max(q + 1, 6), max(q + 1, 6) + 16))
    for pos, (b, k) in zip(rdpos, last_order(0)):
        head[pos].ds += v_read(aV(b, k), vRD, b, k)
    head[rdpos[0]].pre = ["s_waitcnt vmcnt(0)", "s_barrier"] + ts(cfg, 2)
    if cfg.st1 == 1: stamp(cfg, head[rdpos[0]].pre.append, 1)
    for pos in range(rdpos[0], 33):
        issued = sum(1 for p2 in rdpos if p2 < pos)
        n = pos - 17
        assert issued > n
        allow = 2 * issued if n < 0 else 2 * (issued - n - 1)
        if n >= 0 or allow > 12: head[pos].scalar.append(f"s_waitcnt lgkmcnt({min(allow, 12)})")
    rv, rdd = recip_ops(True)
    q = max(rdpos[-1] + 1, 22)
    while rv:
        c = 8 if "v_rcp" in rv[0] else 4
        if 8 - sum(8 if "v_rcp" in y else 4 for y in head[q].valu) >= c: head[q].valu.append(rv.pop(0))
        else: q += 1
    assert q <= 32, q
    emit_slots(cfg, head[:q + 1], A)
    hrest = head[q + 1:]
    for sl in hrest:
        sl.scalar = [("s_waitcnt lgkmcnt(0)" if y.startswith("s_waitcnt") else y) for y in sl.scalar]
    body = hrest + last_slots(1) + last_slots(2)
    nh = len(hrest)
    body[0].scalar = ["s_waitcnt lgkmcnt(0)"]
    for sl in body[1:nh]: sl.scalar = []
    body[0].ds += rdd[0:3]; body[1].ds += rdd[3:6]
    first = max(nh + 1, 6)
    body[2].scalar.append("s_branch L_slow" if cfg.force_slow else "s_cbranch_vccnz L_slow")
    body[first].scalar.append("s_waitcnt lgkmcnt(0)")
    rows = [(j, r) for j in range(3) for r in range(4)]
    span = (len(body) - first) / 8.0
    for n in range(8):
        j, r = rows[n]
        a0, a1 = first + int(round(n * span)), first + int(round((n + 1) * span))
        if j == 1: a0 = max(a0, nh + 17)
        v = scale_ops(j, False)[8 * r:8 * r + 8]
        if j == 1: v.reverse()
        v += cvt_ops(j, r)
        for k, y in enumerate(v): body[a0 + k * (a1 - a0) // 12].valu.append(y)
        if n >= 1: body[a0].ds += lds_ops(*rows[n - 1])
        if n >= 2:
            body[a0 + 1].scalar.append("s_waitcnt lgkmcnt(3)")
            body[a0 + 1].ds.append(store_op(*rows[n - 2]))
    body[first + 1].pre = ts(cfg, 4)
    body[nh + 16].pre = ts(cfg, 5)
    mark = len(L)
    emit_slots(cfg, body, A)
    slow_at = next(n for n in range(mark, len(L)) if "L_slow" in L[n]) + 1
    if cfg.st1 == 2: stamp(cfg, A, 1)
    L.extend(ts(cfg, 6))
    for y in lds_ops(1, 3): A(y)
    A("s_waitcnt lgkmcnt(3)"); A(store_op(1, 2))
    sc = scale_ops(2, True)
    for y in sc[0:8] + cvt_ops(2, 0): A(y)
    A("s_waitcnt lgkmcnt(0)"); A(store_op(1, 3))
    for y in lds_ops(2, 0) + cvt_ops(2, 1): A(y)
    for y in lds_ops(2, 1) + sc[8:16] + cvt_ops(2, 2): A(y)
    A("s_waitcnt lgkmcnt(3)"); A(store_op(2, 0))
    for y in lds_ops(2, 2) + cvt_ops(2, 3): A(y)
    A("s_waitcnt lgkmcnt(3)"); A(store_op(2, 1))
    for y in lds_ops(2, 3): A(y)
    A("s_waitcnt lgkmcnt(3)"); A(store_op(2, 2))
    A("s_waitcnt lgkmcnt(0)"); A(store_op(2, 3))
    L.extend(ts(cfg, 7))
    A("L_fin:")
    if cfg.stamps:
        stamp(cfg, A, 4)
        A("s_waitcnt vmcnt(0)")
        stamp(cfg, A, 5)
        A("s_mov_b32 s42, 0x100000"); A("s_mov_b32 s43, 0x20000")
        A("s_getreg_b32 s62, hwreg(HW_REG_XCC_ID)")
        A("s_waitcnt lgkmcnt(0)")
        for n in range(6): A(f"v_mov_b32 v{12+n}, s{50+2*n}")
        A("s_sub_u32 s66, s66, s64"); A("v_mov_b32 v18, s62"); A("v_mov_b32 v19, s66")
        A(f"s_lshl_b32 s37, s2, 2"); A(f"s_add_u32 s37, s37, s{sW}"); A("s_lshl_b32 s37, s37, 5")
        A("v_mov_b32 v10, s37")
        A(f"buffer_store_dwordx4 v[12:15], v10, {SRD_WS}, 0 offen")
        A(f"buffer_store_dwordx4 v[16:19], v10, {SRD_WS}, 0 offen offset:16")
        if cfg.tst:
            for n in range(8): A(f"v_mov_b32 v{20+n}, s{76+2*n}")
            A("s_mov_b32 s37, 0x10000")
            A(f"buffer_store_dwordx4 v[20:23], v10, {SRD_WS}, s37 offen")
            A(f"buffer_store_dwordx4 v[24:27], v10, {SRD_WS}, s37 offen offset:16")
    if cfg.enc is not None:
        stamp(cfg, A, 4)
        A("s_waitcnt vmcnt(0)")
        stamp(cfg, A, 5)
        A("s_waitcnt lgkmcnt(0)")
        if cfg.encwg is not None:
            A(f"s_cmp_lg_u32 s2, {cfg.encwg}")
            A("s_cbranch_scc1 L_end")
        A(f"s_sub_u32 s38, s{50+2*cfg.enc[1]}, s{50+2*cfg.enc[0]}")
        A("s_mul_i32 s38, s38, 10")
        A("s_add_u32 s38, s38, 10000")
        A("L_spin:")
        A("s_sleep 4")
        A("s_memrealtime s[72:73]")
        A("s_waitcnt lgkmcnt(0)")
        A("s_sub_u32 s72, s72, s50")
        A("s_cmp_lt_u32 s72, s38")
        A("s_cbranch_scc1 L_spin")
    A("L_end:")
    A("s_endpgm")
    tail = L[tail0:]
    slow0 = len(L)
    A("L_slow:")
    A("s_waitcnt vmcnt(0) lgkmcnt(0)")
    A("s_nop 7")
    vM, vAL, vAT, vMX = vP(1, 0, 0), vP(1, 0, 0) + 4, vP(1, 0, 0) + 8, vS(2, 0)
    HALF = 8 * BS
    A("s_lshl_b32 s39, s2, 18")
    A("s_add_u32 s16, s6, s39"); A("s_addc_u32 s17, s7, 0")
    A("s_mov_b32 s18, 262144"); A("s_mov_b32 s22, 262144")
    A(f"s_lshl_b32 s38, s{sW}, 10")
    A(f"v_subrev_u32 v{vDMA}, s38, v{vDMA}")
    A(f"v_add_u32 v{vKB}, s{sPRIV}, v{vKB}")
    A(f"v_add_u32 v{vVB}, s{sPRIV}, v{vVB}")
    for r in range(0, 96, 2): A(f"v_mov_b64 {V2(vO(0,0)+r)}, 0")
    for r in range(12): A(f"v_accvgpr_write_b32 a{aL(0)+r}, 0")
    for j in range(3): A(f"v_mov_b32 v{vM+j}, 0xff7fffff")
    A(f"s_mov_b32 s{sK}, 0")
    slowl0 = len(L)
    A("L_slow_loop:")
    for srd, base in ((SRD_K, 0), (SRD_V, HALF)):
        for a in range(8):
            A(f"s_add_u32 m0, s{sPRIV}, {base + a * BS}")
            A(f"s_add_u32 s38, s{sK}, {a * 1024}")
            A(f"buffer_load_dwordx4 v{vDMA}, {srd}, s38 offen lds")
    A("s_waitcnt vmcnt(0)")
    for kb in range(2):
        for s in range(4): A(k_read(16 * kb + 4 * s, vKB, kb, s))
    A("s_waitcnt lgkmcnt(0)")
    for b in range(8):
        for y in v_read(32 + 4 * b, vVB, b, 0, HALF): A(y)
        if b == 3: A("s_waitcnt lgkmcnt(0)")
    for kb in range(2):
        for j in range(3):
            for s in range(4):
                d = vS(kb, j)
                A(f"{MF} {V4(d)}, {A4(16 * kb + 4 * s)}, {V4(vQ(j,s))}, {'0' if s == 0 else V4(d)}")
    A("s_nop 7")
    for j in range(3):
        s0, s1 = vS(0, j), vS(1, j)
        A(f"v_max3_f32 v{vMX+j}, v{s0}, v{s0+1}, v{s0+2}")
        A(f"v_max3_f32 v{vMX+j}, v{vMX+j}, v{s0+3}, v{s1}")
        A(f"v_max3_f32 v{vMX+j}, v{vMX+j}, v{s1+1}, v{s1+2}")
        A(f"v_max3_f32 v{vMX+j}, v{vMX+j}, v{s1+3}, v{vM+j}")
    xmax(A, [vMX + j for j in range(3)], [vMX + 4 + j for j in range(3)])
    for j in range(3): A(f"v_sub_f32 v{vAL+j}, v{vM+j}, v{vMX+j}")
    for j in range(3): A(f"v_exp_f32 v{vAL+j}, v{vAL+j}")
    for j in range(3): A(f"v_mov_b32 v{vM+j}, v{vMX+j}")
    A("s_waitcnt lgkmcnt(0)")
    for j in range(3): A(f"ds_write_b32 v{vLW}, v{vAL+j} offset:{64 * j}")
    A("s_waitcnt lgkmcnt(0)")
    for j in range(3): A(f"ds_read_b128 {V4(vAT + 4 * j)}, v{vLR} offset:{64 * j}")
    for j in range(3):
        for r in range(4):
            A(f"v_accvgpr_read_b32 v{vMX+8}, a{aL(j)+r}")
            A(f"v_mul_f32 v{vMX+8}, v{vMX+8}, v{vAL+j}")
            A(f"v_accvgpr_write_b32 a{aL(j)+r}, v{vMX+8}")
    for kb in range(2):
        for j in range(3):
            for r in range(4): A(f"v_sub_f32 v{vS(kb,j)+r}, v{vS(kb,j)+r}, v{vM+j}")
    for y, kb, j in exps0:
        if kb < 2: A(y)
    A("s_waitcnt lgkmcnt(0)")
    for y, kb, j in cvts0:
        if kb < 2: A(y)
    for j in range(3):
        for b in range(8):
            for r in range(4): A(f"v_mul_f32 v{vO(j,b)+r}, v{vO(j,b)+r}, v{vAT+4*j+r}")
    A("s_nop 1")
    for j in range(3): A(f"{MF} {A4(aL(j))}, {A4(aONE)}, {V4(vP(0,j,0))}, {A4(aL(j))}")
    for b in range(8):
        for j in range(3):
            A(f"{MF} {V4(vO(j,b))}, {V4(vP(0,j,0))}, {A4(32 + 4 * b)}, {V4(vO(j,b))}")
    A(f"s_add_u32 s{sK}, s{sK}, 8192")
    A(f"s_cmp_lt_u32 s{sK}, 262144")
    A("s_cbranch_scc1 L_slow_loop")
    slowl1 = len(L)
    A("s_nop 7")
    rv, rdd = recip_ops(False)
    for y in rv + ["s_nop 0"] + rdd + ["s_waitcnt lgkmcnt(0)"]: A(y)
    A(f"s_add_u32 s{sQ+1}, s{sQ}, 4096"); A(f"s_add_u32 s{sQ+2}, s{sQ}, 8192")
    for j in range(3):
        for y in scale_ops(j, True): A(y)
        for r in range(4):
            for y in cvt_ops(j, r) + lds_ops(j, r): A(y)
        A("s_waitcnt lgkmcnt(0)")
        for r in range(4): A(store_op(j, r))
    A("s_branch L_fin")
    errs = check_hazards(pro + even + odd + even + odd + tail, "fast")
    errs += check_hazards(L[tail0:slow_at] + L[slow0:slowl1] + L[slowl0:], "slow")
    errs += check_lgkm(pro + even + odd + even + odd + tail, "fast")
    errs += check_lgkm(L[tail0:slow_at] + L[slow0:slowl1] + L[slowl0:], "slow")
    if errs:
        raise RuntimeError("\n".join(errs))
    A('.section .rodata,"a"')
    A(".p2align 6")
    A(f".amdhsa_kernel {NAME}")
    A(f"  .amdhsa_next_free_vgpr {256 + NAGPR}")
    A("  .amdhsa_next_free_sgpr 102")
    A("  .amdhsa_accum_offset 256")
    A("  .amdhsa_group_segment_fixed_size 0")
    A("  .amdhsa_kernarg_size 48")
    A("  .amdhsa_user_sgpr_count 2")
    A("  .amdhsa_user_sgpr_kernarg_segment_ptr 1")
    A("  .amdhsa_system_sgpr_workgroup_id_x 1")
    A("  .amdhsa_float_denorm_mode_32 3")
    A(".end_amdhsa_kernel")
    out = []
    for l in L:
        out.append(l if (l.endswith(":") or l.startswith((".", ";", " "))) else "    " + l)
    return "\n".join(out) + "\n"

if __name__ == "__main__":
    kw = {}
    for a in sys.argv[1:]:
        k, v = a.split("=", 1)
        try: v = eval(v)
        except Exception: pass
        kw[k] = v
    sys.stdout.write(gen(Cfg(**kw)))
```

```python
import re

def regs(tok):
    tok = tok.strip()
    tok = tok.replace("-", "") if tok.startswith("-") else tok
    m = re.fullmatch(r"abs\((.*)\)|\|(.*)\|", tok)
    if m: tok = m.group(1) or m.group(2)
    m = re.fullmatch(r"([vas])\[(\d+):(\d+)\]", tok)
    if m: return {f"{m.group(1)}{i}" for i in range(int(m.group(2)), int(m.group(3)) + 1)}
    m = re.fullmatch(r"([vas])(\d+)", tok)
    if m: return {tok}
    if tok in ("vcc", "m0", "exec"): return {tok}
    return set()

TRANS = ("v_exp_f32", "v_log_f32", "v_rcp_f32", "v_rsq_f32", "v_sqrt_f32")

class Ins:
    def __init__(self, text):
        self.text = text
        t = text.split(";")[0].strip()
        self.label = t.endswith(":")
        self.directive = t.startswith(".") and not self.label
        self.op = t.split()[0] if t and not self.label else ""
        rest = t[len(self.op):].strip() if self.op else ""
        ops = [o.strip() for o in rest.split(",")] if rest else []
        if ops:
            last = ops[-1].split()
            self.mods = last[1:]
            ops[-1] = last[0]
        else:
            self.mods = []
        self.ops = ops
        op = self.op
        self.mfma = op.startswith("v_mfma")
        self.valu = op.startswith("v_") and not self.mfma
        self.trans = any(op.startswith(x) for x in TRANS)
        self.ds = op.startswith("ds_")
        self.vmem = op.startswith("buffer_") or op.startswith("global_")
        self.salu = op.startswith("s_")
        self.dma = self.vmem and "lds" in self.mods
        self.w, self.r = set(), set()
        self.srcc = set()
        if self.label or self.directive or not op or op == "buffer_wbl2":
            return
        if self.mfma:
            self.w = regs(ops[0]); self.srcc = regs(ops[3]); self.ab = regs(ops[1]) | regs(ops[2]); self.r = self.ab | self.srcc
        elif op.startswith(("v_permlane", "v_swap")):
            self.w = regs(ops[0]) | regs(ops[1]); self.r = set(self.w)
        elif op.startswith("v_cmp"):
            self.w = regs(ops[0]); self.r = set().union(*[regs(o) for o in ops[1:]])
        elif self.valu:
            self.w = regs(ops[0]); self.r = set().union(*[regs(o) for o in ops[1:]]) if len(ops) > 1 else set()
            if op.startswith("v_fmac"): self.r |= self.w
        elif op.startswith("ds_read"):
            self.w = regs(ops[0]); self.r = regs(ops[1]) if len(ops) > 1 else set()
        elif op.startswith("ds_write"):
            self.r = set().union(*[regs(o) for o in ops])
        elif self.dma:
            self.r = set().union(*[regs(o) for o in ops]) | {"m0"}
        elif op.startswith(("buffer_load", "global_load")):
            self.w = regs(ops[0]); self.r = set().union(*[regs(o) for o in ops[1:]])
        elif op.startswith("buffer_store"):
            self.r = set().union(*[regs(o) for o in ops]); self.data = regs(ops[0])
        elif self.salu:
            if op.startswith(("s_cmp", "s_bitcmp", "s_waitcnt", "s_nop", "s_barrier", "s_branch", "s_cbranch", "s_endpgm", "s_setprio")):
                self.r = set().union(*[regs(o) for o in ops]) if ops else set()
            else:
                self.w = regs(ops[0]); self.r = set().union(*[regs(o) for o in ops[1:]]) if len(ops) > 1 else set()
    def states(self):
        if self.label or self.directive or not self.op: return 0
        if self.op == "s_nop": return int(self.ops[0], 0) + 1
        return 1

def passes(i):
    return 8 if "32x32" in i.op else 4

def check_hazards(lines, name=""):
    ins = [Ins(l) for l in lines]
    ins = [i for i in ins if i.states() > 0]
    errs = []
    for n, c in enumerate(ins):
        dist = 0
        for p in reversed(ins[max(0, n - 24):n]):
            need = 0
            v = lambda s: {x for x in s if x[0] in "va" and x not in ("vcc",)}
            if p.valu and c.mfma and (v(p.w) & c.r): need = max(need, 2)
            if p.mfma:
                d = 8 if passes(p) == 4 else 12
                if c.mfma:
                    if p.w & c.ab: need = max(need, d)
                    if (p.w & c.srcc) and p.w != c.srcc: need = max(need, d - 2)
                    if (p.w & c.w) and not (p.w & c.srcc): need = max(need, d)
                elif (c.valu or c.ds or c.vmem) and (p.w & (c.r | c.w)): need = max(need, d)
                if c.valu and (p.srcc & c.w): need = max(need, 3 if passes(p) == 4 else 7)
            if p.trans and c.valu and not c.trans and (p.w & c.r): need = max(need, 1)
            if p.valu and c.op.startswith("v_permlane") and (v(p.w) & c.r): need = max(need, 2)
            if p.valu and c.op.startswith(("v_readfirstlane", "v_readlane")) and (v(p.w) & c.r): need = max(need, 1)
            if p.valu and "dpp" in c.op and (v(p.w) & c.r): need = max(need, 2)
            if p.salu and "m0" in p.w and c.dma: need = max(need, 1)
            sw = {x for x in p.w if x[0] == "s" or x == "vcc"}
            if p.valu and c.vmem and (sw & c.r): need = max(need, 5)
            if p.valu and c.valu and (sw & c.r): need = max(need, 2)
            if p.op.startswith("buffer_store_dwordx4") and (p.data & c.w): need = max(need, 2 if c.valu else 1)
            if need > dist:
                errs.append(f"{name}: need {need} have {dist}: [{p.text}] -> [{c.text}]")
            dist += p.states()
    return errs

def check_lgkm(lines, name=""):
    errs, q = [], []
    for l in lines:
        i = Ins(l)
        if i.states() == 0: continue
        if i.op == "s_waitcnt":
            m = re.search(r"lgkmcnt\((\d+)\)", l)
            if m:
                n = int(m.group(1))
                q = q[len(q) - n:] if n < len(q) else q
                if n == 0: q = []
            continue
        for w, t in q:
            if w & (i.r | i.w): errs.append(f"{name}: [{t}] not waited before [{l}]")
        if i.ds:
            q.append((set(i.w), l))
            if len(q) > 15: errs.append(f"{name}: {len(q)} LDS ops outstanding at [{l}]")
    return errs
```

```python
import math, struct, sys
from asmlib import Ins, check_hazards, check_lgkm

NAME = "standalone__mha_softmax__near_ridge_kernel"
BS = 1056
TILE = 16 * BS
KRING = 0
VRING = 2 * TILE
PRIV = 6 * TILE
PRIVSZ = 15616
LDS_BYTES = PRIV + 4 * PRIVSZ
ESTR = 1280
LOFF = 12 * ESTR

def f2u(x): return struct.unpack("<I", struct.pack("<f", x))[0]
C_SCALE = f2u(math.log2(math.e) / math.sqrt(128.0))
L_MAX = f2u(2.0 ** 40)

vDMA, vKB, vVB, vVX = 0, 1, 2, 3
def vO(j, b): return 4 + (j * 8 + b) * 4
def vS(kb, j): return 100 + (kb * 3 + j) * 4
def vP(par, j, k): return 148 + par * 24 + (j * 2 + k) * 4
def vNM(j): return 196 + j * 4
def vQ(j, s): return 208 + (j * 4 + s) * 4
def aF(st, i): return st * 16 + i * 4
aONE = 64
def aL(j): return 68 + j * 4
aADDR = 80
aLAST = 88
NAGPR = 152
def V4(r): return f"v[{r}:{r+3}]"
def V2(r): return f"v[{r}:{r+1}]"
def A4(r): return f"a[{r}:{r+3}]"
def A2(r): return f"a[{r}:{r+1}]"
sW, sWK, sPRIV, sK, sTHR, sQ = 3, 28, 29, 32, 36, 37
sV, sWV = 30, 31
sINC, sALT, sSEL, sCI = 44, 46, 68, 70
sWEND, sW0V, sDR, sTOG = 92, 93, 94, 99
SRD_Q, SRD_K, SRD_V, SRD_O, SRD_WS = "s[12:15]", "s[16:19]", "s[20:23]", "s[24:27]", "s[40:43]"
MF = "v_mfma_f32_16x16x32_bf16"

class Cfg:
    lead = 4
    extra = ()
    drain = ()
    ldflags = "nt"
    stflags = "nt"
    dma_slots = (1, 13, 25, 37)
    v_slots = None
    vwait = 4
    rd_slots = (0, 2, 4, 6)
    early = ()
    warm = True
    pw = 0
    tlb = False
    wst = 0
    boost = True
    wbl2 = False
    mix = True
    spread = True
    stamps = False
    st1 = 0
    force_slow = False
    pst = False
    trace = False
    gw = 4
    enc = None
    encwg = None
    tst = False
    pad = 0
    nodma = False
    hold = None
    ramp = None
    def __init__(self, **kw):
        for k, v in kw.items():
            assert hasattr(Cfg, k), k
            setattr(self, k, v)
        assert self.lead == 4
        self.net = sum(self.extra) - len(self.drain)
        assert 0 <= self.net <= 4
        b = 0
        for p in range(28):
            b += self.extra[p] if p < len(self.extra) else 0
            assert b <= 7
            if p % 2 == 1 and p >= len(self.extra): assert b >= self.vwait - 4, (p, b)
            if p % 2 == 1 and p // 2 in self.drain: b -= 1
            assert b >= 0

def group(g):
    if g == 0: return "K"
    if g <= 3: return "Q"
    return "K" if (g - 4) % 2 == 0 else "V"

vQD = vP(1, 2, 1) + 3

def ld_ins(cfg, srd, so, off=0, va=vDMA):
    o = f" offset:{off}" if off else ""
    return f"buffer_load_dwordx4 v{va}, {srd}, s{so} offen{o} {cfg.ldflags} lds".replace("  ", " ")

def v_post(cfg, inc=None):
    inc = inc or ("1024" if cfg.mix else "4096", str(4 * BS))
    return ([[f"s_add_u32 s{sV}, s{sV}, {inc[0]}"], [f"s_add_u32 s{sWV}, s{sWV}, {inc[1]}"]]
            + ([[f"s_or_b32 s{sV}, s{sV}, 0x3000"]] if cfg.mix else [])
            + [[f"s_cmp_eq_u32 s{sWV}, s{sWEND}", f"s_cselect_b32 s{sWV}, s{sW0V}, s{sWV}"]])

def dma_piece(cfg, p, drainable=False):
    g, i = divmod(p, 4)
    kind = group(g)
    if kind == "Q":
        n = (g - 1) * 4 + i
        return [[f"s_add_u32 m0, s{sPRIV}, {n * BS}"]], ld_ins(cfg, SRD_Q, sQ, 0, vQD), [[f"s_add_u32 s{sQ}, s{sQ}, 1024"]]
    if kind == "K":
        t = 0 if g == 0 else (g - 4) // 2 + 1
        if cfg.mix:
            return ([[f"s_add_u32 m0, s{sWK}, {KRING + (t & 1) * TILE + 4 * i * BS - 1024 * i}"]], ld_ins(cfg, SRD_K, sK, 1024 * i),
                    [[f"s_add_u32 s{sK}, s{sK}, 16384"]] if i == 3 else [])
        return [[f"s_add_u32 m0, s{sWK}, {KRING + (t & 1) * TILE + 4 * i * BS}"]], ld_ins(cfg, SRD_K, sK), [[f"s_add_u32 s{sK}, s{sK}, 4096"]]
    if drainable:
        pre = [[f"s_bitcmp1_b32 s{sDR}, 0", f"s_cselect_b64 s[{sSEL}:{sSEL+1}], s[{sALT}:{sALT+1}], s[{sV}:{sWV}]",
                f"s_cselect_b64 s[{sCI}:{sCI+1}], 0, s[{sINC}:{sINC+1}]"], [f"s_mov_b32 m0, s{sSEL+1}"]]
        return pre, ld_ins(cfg, SRD_V, sSEL), v_post(cfg, (f"s{sCI}", f"s{sCI+1}")) + [[f"s_lshr_b32 s{sDR}, s{sDR}, 1"]]
    return [[f"s_mov_b32 m0, s{sWV}"]], ld_ins(cfg, SRD_V, sV), v_post(cfg)

def k_read(dst, base, kb, s, off=0):
    return f"ds_read_b128 {A4(dst)}, v{base} offset:{off + kb * 4 * BS + s * 256}"

def v_read(dst, base, b, k, off=0):
    o = off + 8 * k * BS + (b >> 1) * 256 + (b & 1) * 32
    return [f"ds_read_b64_tr_b16 {A2(dst)}, v{base} offset:{o}",
            f"ds_read_b64_tr_b16 {A2(dst + 2)}, v{base} offset:{o + 4 * BS}"]

def qk_order(kb):
    js = [0, 1, 2] if kb % 2 == 0 else [2, 1, 0]
    out = []
    for n, j in enumerate(js):
        up = (kb * 3 + n) % 2 == 0
        out += [(j, s) for s in ([0, 1, 2, 3] if up else [3, 2, 1, 0])]
    return out

def pv_order(g):
    out = []
    for bb in range(2):
        b = 2 * g + bb
        js = [0, 1, 2] if b % 2 == 0 else [2, 1, 0]
        for n, j in enumerate(js):
            up = (b * 3 + n) % 2 == 0
            out += [(b, j, k) for k in ([0, 1] if up else [1, 0])]
    return out

class Slot:
    def __init__(self, mfma, frag=None):
        self.mfma, self.frag = mfma, frag
        self.pre, self.scalar, self.ds, self.dma, self.valu = [], [], [], [], []
        self.dsfrag = []
    def cap(self):
        return 8 - 4 * len(self.ds) - 8 * len(self.dma) - 4 * max(0, len(self.scalar) - 1) - sum(8 if "v_exp" in v else 4 for v in self.valu)

def qk_group(kb, st):
    sl, seen = [], set()
    for j, s in qk_order(kb):
        d = vS(kb, j)
        c = V4(d) if j in seen else V4(vNM(j))
        seen.add(j)
        sl.append(Slot(f"{MF} {V4(d)}, {A4(aF(st, s))}, {V4(vQ(j, s))}, {c}", (st, s)))
    return sl

def pv_group(g, st, par):
    return [Slot(f"{MF} {V4(vO(j, b))}, {V4(vP(par, j, k))}, {A4(aF(st, (b & 1) * 2 + k))}, {V4(vO(j, b))}", (st, (b & 1) * 2 + k))
            for b, j, k in pv_order(g)]

def sum_group(par):
    return [Slot(f"{MF} {A4(aL(j))}, {A4(aONE)}, {V4(vP(par, j, k))}, {A4(aL(j))}") for j in range(3) for k in range(2)]

def first_use(slots):
    out = []
    for s in slots:
        if s.frag not in out: out.append(s.frag)
    return out

def k_reads_for(kb, st, off):
    return [([k_read(aF(st, fr[1]), vKB, kb, fr[1], off)], fr) for fr in first_use(qk_group(kb, st))]

def v_reads_for(g, st, off):
    return [(v_read(aF(st, fr[1]), vVB, 2 * g + (fr[1] >> 1), fr[1] & 1, off), fr) for fr in first_use(pv_group(g, st, 0))]

def sm_ops(par):
    exps, cvts = [], []
    for kb in range(4):
        js = [0, 1, 2] if kb % 2 == 0 else [2, 1, 0]
        for j in js:
            s = vS(kb, j)
            for h in range(2):
                exps += [(f"v_exp_f32 v{s+2*h}, v{s+2*h}", kb, j), (f"v_exp_f32 v{s+2*h+1}, v{s+2*h+1}", kb, j)]
                cvts.append((f"v_cvt_pk_bf16_f32 v{vP(par, j, kb >> 1) + 2 * (kb & 1) + h}, v{s+2*h}, v{s+2*h+1}", kb, j))
    return exps, cvts

TR_OFF = 60000
TR_PRE = ["s_mov_b32 m0, s95", "s_add_u32 s95, s95, 1", "v_writelane_b32 v3, s96, m0"]

def build_step(cfg, par, peeled=None):
    groups = [pv_group(3, 1, par ^ 1), qk_group(0, 0), qk_group(1, 1), qk_group(2, 0), qk_group(3, 1),
              sum_group(par), pv_group(0, 0, par), pv_group(1, 1, par), pv_group(2, 0, par)]
    ko, vo = KRING + (par ^ 1) * TILE, par * TILE
    reads = [k_reads_for(0, 0, ko), k_reads_for(1, 1, ko), k_reads_for(2, 0, ko), k_reads_for(3, 1, ko), v_reads_for(0, 0, vo),
             [], v_reads_for(1, 1, vo), v_reads_for(2, 0, vo), v_reads_for(3, 1, vo)]
    slots, gs = [], []
    for g, rd in zip(groups, reads):
        gs.append(len(slots))
        for pos, (ins, fr) in zip(cfg.rd_slots, rd):
            g[pos].ds += ins
            g[pos].dsfrag += [fr] * len(ins)
        slots += g
    n = len(slots)
    issued = []
    done = -1
    waits = {}
    for rep in range(2):
        for i, s in enumerate(slots):
            if s.frag is not None:
                need = max((q for q, fr in enumerate(issued) if fr == s.frag), default=-1)
                if need > done:
                    nxt = slots[(i + 1) % n].frag
                    need = max(need, max((q for q, fr in enumerate(issued) if fr == nxt), default=-1)) if nxt else need
                    prev = slots[i - 1]
                    total = len(issued) - len(prev.ds)
                    if i in (gs[0], gs[4]): total = len(issued)
                    assert need < total
                    if rep == 1: waits[i] = total - 1 - need
                    done = need
            issued += s.dsfrag
    for i, c in waits.items():
        if i not in (gs[0], gs[4]):
            slots[i - 1].scalar.append(f"s_waitcnt lgkmcnt({c})")
    for i in (gs[0], gs[4]):
        p = cfg.pad
        while p > 0:
            slots[i].pre.append(f"s_nop {min(p, 16) - 1}"); p -= 16
        if cfg.ramp:
            lab = f"L_ramp_{par}_{i}"
            slots[i].pre += ["s_cselect_b32 s75, 1, 0", "s_mov_b32 s74, s72", f"{lab}:", "s_sub_i32 s74, s74, 1", "s_cmp_gt_i32 s74, 0", f"s_cbranch_scc1 {lab}",
                             f"s_sub_i32 s72, s72, {cfg.ramp[1]}", f"s_max_i32 s72, s72, {cfg.ramp[2]}", "s_cmp_lg_u32 s75, 0"]
        if cfg.hold:
            lab = f"L_hold_{par}_{i}"
            slots[i].pre += ["s_cselect_b32 s75, 1, 0", "s_sub_i32 s72, s72, 1", "s_cmp_lt_i32 s72, 0", f"s_cbranch_scc1 {lab}_x", f"s_mov_b32 s74, {cfg.hold[0]}",
                             f"{lab}:", "s_sub_i32 s74, s74, 1", "s_cmp_gt_i32 s74, 0", f"s_cbranch_scc1 {lab}", f"{lab}_x:", "s_cmp_lg_u32 s75, 0"]
        lg = f" lgkmcnt({waits[i]})" if i in waits else ""
        if peeled:
            slots[i].pre = [f"s_waitcnt vmcnt({peeled[0 if i == gs[0] else 1]}){lg}", "s_barrier"]
        else:
            slots[i].pre += [f"@early {par * 2 + (0 if i == gs[0] else 1)}", f"s_waitcnt vmcnt({cfg.lead if i == gs[0] else cfg.vwait}){lg}",
                             f"L_bar{par * 2 + (0 if i == gs[0] else 1)}:", "s_barrier"]
        if cfg.trace:
            slots[i].pre = TR_PRE + slots[i].pre + ["s_memrealtime s[96:97]"]
    dmaops = set()
    for ph, (start, end) in enumerate(((gs[0], gs[4]), (gs[4], n - 1))):
        lo, pend = start, []
        for m, off in enumerate(list(cfg.dma_slots if ph == 0 or not cfg.v_slots else cfg.v_slots) + [None]):
            if off is None:
                hi, runs = end - 1, pend
            else:
                pre, ld, post = dma_piece(cfg, 4 * (6 + 2 * par + ph) + m, drainable=(ph == 1 and m == 3 and bool(cfg.drain)))
                i = start + off
                assert not slots[i].ds and not slots[i].dma, (i, off)
                slots[i].dma.append(ld)
                hi, runs = i - 1, pend + pre
            flat = [x for r in runs for x in r]
            free = [x for x in range(lo, hi + 1) if not slots[x].scalar]
            if len(free) < len(flat): free = sorted(free + [hi] * (len(flat) - len(free)))
            npost = sum(len(r) for r in pend)
            tgt = free[:npost] + (free[npost - len(flat):] if len(flat) > npost else [])
            for x, q in zip(flat, tgt): slots[q].scalar.append(x)
            dmaops |= set(flat)
            if off is not None: lo, pend = i + 1, post
    at = max(i for i in range(gs[8] + cfg.rd_slots[-1] + 1, n) if slots[i].cap() >= 8)
    slots[at].valu.append(f"v_add_u32 v{vVB}, s{sTOG}, v{vVB}" if par == 1 else "@none")
    if par == 1:
        next(sl for sl in slots[gs[2]:gs[4]] if not sl.scalar).scalar.append(f"s_sub_u32 s{sTOG}, 0, s{sTOG}")
    chain_end, chain_start = {}, {}
    for kb in range(4):
        for q, (j, s) in enumerate(qk_order(kb)):
            chain_end[(kb, j)] = gs[1 + kb] + q
            chain_start.setdefault((kb, j), gs[1 + kb] + q)
    start = chain_end[(0, 0)] + 8
    ops = {p: sm_ops(p) for p in (0, 1)}
    ne = nc = 0
    late = []
    for t in range(start, start + n):
        i, wrapped = t % n, t >= n
        sl = slots[i]
        exps, cvts = ops[par if wrapped else par ^ 1]
        ne0 = ne
        if sl.cap() >= 8 and ne < 48 and t >= chain_end[exps[ne][1:]] + 5:
            sl.valu.append(exps[ne][0])
            if wrapped: late.append(("e", ne))
            ne += 1
        else:
            while sl.cap() >= 4 and nc < 24 and 2 * nc + 2 <= ne0:
                assert t < n + chain_start[cvts[nc][1:]] and t < n + gs[5] - 1
                sl.valu.append(cvts[nc][0])
                if wrapped: late.append(("c", nc))
                nc += 1
    assert ne == 48 and nc == 24, (ne, nc)
    if peeled:
        exps, cvts = ops[par ^ 1]
        done = set()
        late = list(late)
        for i, sl in enumerate(slots):
            sl.scalar = [y for y in sl.scalar if y not in dmaops]
            sl.dma = []
            sl.valu = [y for y in sl.valu if y != "@none"]
            if i >= start:
                while sl.cap() >= 4:
                    c = next((c for k, c in late if k == "c" and exps[2 * c][0] in done and exps[2 * c + 1][0] in done), None)
                    if c is None: break
                    late.remove(("c", c)); sl.valu.append(cvts[c][0])
                done |= set(sl.valu)
    return slots, gs, late

def emit_slots(cfg, slots, A):
    for sl in slots:
        for x in sl.pre: A(x)
        A(sl.mfma)
        for x in sl.scalar + sl.ds + ([] if cfg.nodma else sl.dma) + sl.valu:
            if x != "@none": A(x)

def xmax(A, regs, tmp):
    for op in ("v_permlane16_swap_b32", "v_permlane32_swap_b32"):
        for r, x in zip(regs, tmp): A(f"v_mov_b32 v{x}, v{r}")
        A("s_nop 1")
        for r, x in zip(regs, tmp): A(f"{op} v{r}, v{x}")
        for r, x in zip(regs, tmp): A(f"v_max_f32 v{r}, v{r}, v{x}")

def stamp(cfg, A, n):
    if cfg.enc is not None and (n == 0 or n in cfg.enc):
        A(f"s_memrealtime s[{50+2*n}:{51+2*n}]")
    if cfg.stamps:
        A(f"s_memrealtime s[{50+2*n}:{51+2*n}]")
        if n == 2: A("s_memtime s[64:65]")
        if n == 3: A("s_memtime s[66:67]")

def ts(cfg, n):
    return [f"s_memtime s[{76+2*n}:{77+2*n}]"] if cfg.tst else []

def ps(cfg, n):
    return [f"s_memrealtime s[{76+2*n}:{77+2*n}]"] if cfg.pst else []

def gen(cfg):
    L = []
    A = L.append
    A(f"; @launch grid=(256,1,1) block=(256,1,1) lds={LDS_BYTES}")
    A('.amdgcn_target "amdgcn-amd-amdhsa--gfx950"')
    A(".text")
    A(f".globl {NAME}")
    A(".p2align 8")
    A(f".type {NAME},@function")
    A(f"{NAME}:")
    code0 = len(L)
    stamp(cfg, A, 0)
    A("s_cmp_ge_u32 s2, 256")
    A("s_cbranch_scc1 L_end")
    A("s_load_dwordx8 s[4:11], s[0:1], 0")
    if cfg.stamps: A("s_load_dwordx2 s[40:41], s[0:1], 40")
    t = vP(1, 0, 0)
    if cfg.warm:
        A("s_getpc_b64 s[34:35]")
        A("L_pc:")
        A(f"v_lshlrev_b32 v{t+8}, 7, v0")
        A(f"v_min_u32 v{t+8}, {'L_end' if cfg.warm is True else cfg.warm}-L_pc, v{t+8}")
        A(f"v_mov_b32 v{t+9}, s35")
        A(f"v_add_co_u32 v{t+8}, vcc, s34, v{t+8}")
    A(f"v_lshrrev_b32 v{t}, 6, v0")
    A(f"v_and_b32 v{t+1}, 63, v0")
    if cfg.warm:
        A(f"v_addc_co_u32 v{t+9}, vcc, 0, v{t+9}, vcc")
        A(f"global_load_dword v{t+10}, {V2(t+8)}, off")
    A(f"v_readfirstlane_b32 s{sW}, v{t}")
    A(f"v_and_b32 v{t+2}, 3, v0")
    A(f"v_bfe_u32 v{t+3}, v0, 2, 2")
    A(f"v_lshrrev_b32 v{t+4}, 4, v{t+1}")
    A(f"v_lshlrev_b32 v{vDMA}, 4, v{t+2}")
    A(f"v_lshl_add_u32 v{vDMA}, v{t+4}, 6, v{vDMA}")
    A(f"v_lshl_add_u32 v{vQD}, v{t+3}, 8, v{vDMA}")
    A(f"v_lshl_add_u32 v{vDMA}, v{t+3}, {12 if cfg.mix else 8}, v{vDMA}")
    A(f"v_lshl_add_u32 v{vDMA}, v{t}, {8 if cfg.mix else 10}, v{vDMA}")
    A("s_lshl_b32 s39, s2, 18")
    A("s_mul_i32 s38, s2, 49152")
    A(f"s_mul_i32 s{sWK}, s{sW}, {BS}")
    A(f"s_mul_i32 s{sPRIV}, s{sW}, {PRIVSZ}")
    A(f"s_mul_i32 s{sQ}, s{sW}, 12288")
    A(f"s_add_u32 s{sPRIV}, s{sPRIV}, {PRIV}")
    A("s_mov_b32 s14, 49152"); A("s_mov_b32 s15, 0x20000")
    A("s_mov_b32 s18, 262144"); A("s_mov_b32 s19, 0x20000")
    vb = 0x3000 if cfg.mix else 0
    A(f"s_mov_b32 s22, {262144 + vb}"); A("s_mov_b32 s23, 0x20000")
    A("s_mov_b32 s26, 49152"); A("s_mov_b32 s27, 0x20000")
    A(f"s_mov_b32 s{sK}, 0"); A(f"s_mov_b32 s{sV}, {vb}")
    A(f"s_add_u32 s{sW0V}, s{sWK}, {VRING}")
    A(f"s_add_u32 s{sWEND}, s{sWK}, {VRING + 4 * TILE}")
    A(f"s_mov_b32 s{sWV}, s{sW0V}")
    A("s_waitcnt lgkmcnt(0)")
    L.extend(ps(cfg, 0))
    A("s_add_u32 s16, s6, s39"); A("s_addc_u32 s17, s7, 0")
    A("s_add_u32 s12, s4, s38"); A("s_addc_u32 s13, s5, 0")
    npc = [0]
    def issue(n):
        for _ in range(n):
            pre, ld, post = dma_piece(cfg, npc[0]); npc[0] += 1
            for r in pre:
                for y in r: A(y)
            A("s_nop 0")
            A(ld)
            for r in post:
                for y in r: A(y)
    def gated(n):
        for _ in range(n):
            A(f"s_waitcnt vmcnt({cfg.pw - 1})"); issue(1)
    n0 = cfg.pw if cfg.pw else 4 + cfg.lead
    issue(1 if cfg.spread else n0)
    init0 = len(L)
    A("s_add_u32 s24, s10, s38"); A("s_addc_u32 s25, s11, 0")
    A("s_add_u32 s20, s8, s39"); A("s_addc_u32 s21, s9, 0")
    if vb:
        A(f"s_sub_u32 s20, s20, {vb}"); A("s_subb_u32 s21, s21, 0")
    A(f"v_accvgpr_write_b32 a{aADDR+5}, v{vQD}")
    x = vNM(0)
    A(f"v_mov_b32 v{x}, v{t+1}")
    vEW, vER, vOST, vLW, vLR = x + 1, x + 2, x + 3, x + 4, x + 5
    addr = [f"v_lshrrev_b32 v{x+6}, 4, v{x}", f"v_and_b32 v{x+7}, 15, v{x}", f"v_and_b32 v{x+8}, 1, v{x}",
            f"v_bfe_u32 v{x+9}, v{x}, 1, 1", f"v_bfe_u32 v{x+10}, v{x}, 2, 2",
            f"v_lshlrev_b32 v{vEW}, 4, v{x}", f"v_lshl_add_u32 v{vEW}, v{x+6}, 6, v{vEW}", f"v_add_u32 v{vEW}, s{sPRIV}, v{vEW}",
            f"v_mul_u32_u24 v{vER}, 320, v{x+6}", f"v_lshl_add_u32 v{vER}, v{x+8}, 7, v{vER}", f"v_lshl_add_u32 v{vER}, v{x+10}, 4, v{vER}",
            f"v_lshl_add_u32 v{vER}, v{x+9}, 3, v{vER}", f"v_add_u32 v{vER}, s{sPRIV}, v{vER}",
            f"v_lshl_add_u32 v{vLW}, v{x+7}, 2, s{sPRIV}", f"v_lshl_add_u32 v{vLR}, v{x+6}, 4, s{sPRIV}",
            f"v_and_b32 v{x+8}, 3, v{x}", f"v_bfe_u32 v{x+9}, v{x}, 2, 1", f"v_bfe_u32 v{x+10}, v{x}, 3, 1",
            f"v_lshlrev_b32 v{vOST}, 10, v{x+6}", f"v_lshl_add_u32 v{vOST}, v{x+8}, 5, v{vOST}",
            f"v_lshl_add_u32 v{vOST}, v{x+9}, 4, v{vOST}", f"v_lshl_add_u32 v{vOST}, v{x+10}, 7, v{vOST}"]
    for y in addr: A(y)
    for n in range(5): A(f"v_accvgpr_write_b32 a{aADDR+n}, v{x+1+n}")
    A(f"v_mul_u32_u24 v{vKB}, {BS}, v{t+3}")
    A(f"v_lshl_add_u32 v{vKB}, v{t+2}, 6, v{vKB}")
    A(f"v_lshl_add_u32 v{vKB}, v{t+4}, 4, v{vKB}")
    A(f"v_mul_u32_u24 v{vVB}, {BS}, v{t+4}")
    A(f"v_lshl_add_u32 v{vVB}, v{t+3}, 6, v{vVB}")
    A(f"v_lshl_add_u32 v{vVB}, v{t+2}, 3, v{vVB}")
    A(f"v_add_u32 v{vVB}, {VRING}, v{vVB}")
    A(f"v_add_u32 v{vVX}, s{sPRIV}, v{vKB}")
    A(f"s_mov_b32 s{sINC}, {1024 if cfg.mix else 4096}"); A(f"s_mov_b32 s{sINC+1}, {4 * BS}")
    A(f"s_mov_b32 s{sALT}, {262144 + vb}"); A(f"s_mov_b32 s{sALT+1}, s{sPRIV}")
    A(f"s_mov_b32 s{sDR}, {sum(1 << u for u in cfg.drain):#x}")
    A(f"s_mov_b32 s34, {C_SCALE:#x}"); A(f"s_mov_b32 s35, {C_SCALE:#x}")
    A(f"s_mov_b32 s{sTHR}, {L_MAX:#x}")
    A("s_mov_b32 s33, 0x3f803f80")
    for r in range(96): A(f"v_mov_b32 v{vO(0,0)+r}, 0")
    for r in range(4): A(f"v_accvgpr_write_b32 a{aONE+r}, s33")
    for r in range(12): A(f"v_accvgpr_write_b32 a{aL(0)+r}, 0")
    for r in range(16): A(f"v_accvgpr_write_b32 a{aF(1,0)+r}, 0")
    for r in range(12, 22, 2): A(f"v_mov_b64 {V2(t+r)}, 0")
    A("s_mov_b32 s33, 0xffff0000")
    A(f"s_mov_b32 s{sTOG}, {-2 * TILE}")
    gates = cfg.extra or cfg.early
    if gates:
        code = sum((k if cfg.extra else cfg.lead - k) << (2 * n + 2) for n, k in enumerate(gates))
        assert code < 1 << 64
        A(f"s_mov_b32 s48, {code & 0xffffffff:#x}"); A(f"s_mov_b32 s49, {code >> 32:#x}")
    if cfg.spread:
        init = L[init0:]
        del L[init0:]
        cuts = [len(init) * k // (n0 - 1) for k in range(1, n0)]
        for q, y in enumerate(init):
            A(y)
            if q + 1 in cuts:
                assert not y.startswith(("s_add_u32", "s_sub_u32"))
                issue(1)
    steps = {p: build_step(cfg, p) for p in (0, 1)}
    late = steps[0][2]
    exps0, cvts0 = sm_ops(0)
    L.extend(ps(cfg, 1))
    if cfg.pst:
        A(f"s_waitcnt vmcnt({(cfg.pw or 8) - 1})"); L.extend(ps(cfg, 2))
    if cfg.pw: gated(4 + cfg.lead - cfg.pw)
    A(f"s_waitcnt vmcnt({cfg.lead})")
    L.extend(ps(cfg, 3))
    A("s_barrier")
    L.extend(ps(cfg, 4))
    issue(1 if cfg.pw else 4)
    for kb in range(4):
        if kb == 3: A("s_waitcnt lgkmcnt(6)")
        for s in range(4): A(k_read(aLAST + 16 * kb + 4 * s, vKB, kb, s))
    if cfg.pw: gated(3)
    for j in range(3):
        A(f"s_waitcnt vmcnt({cfg.lead})")
        L.extend(ps(cfg, 5 + j))
        for s in range(4):
            A(f"ds_read_b128 {V4(vQ(j,s))}, v{vVX} offset:{j * 4 * BS + s * 256}")
        issue(1 if cfg.pw else 4)
        for s in range(4):
            if cfg.pw and s == 3: issue(1)
            A(f"s_waitcnt lgkmcnt({3 - s})")
            q = vQ(j, s)
            for r in range(4):
                A(f"v_lshlrev_b32 v{t+2*r}, 16, v{q+r}")
                A(f"v_and_b32 v{t+2*r+1}, s33, v{q+r}")
            for r in range(4): A(f"v_pk_mul_f32 {V2(t+2*r)}, {V2(t+2*r)}, s[34:35]")
            for r in range(4): A(f"v_cvt_pk_bf16_f32 v{q+r}, v{t+2*r}, v{t+2*r+1}")
        if j == 2 and cfg.st1 == 0: stamp(cfg, A, 1)
        s0 = vS(0, j)
        sub = lambda kb: [f"v_sub_f32 v{vS(kb,j)+r}, v{vS(kb,j)+r}, v{t}" for r in range(4)]
        ex = lambda kb: [y for n, (y, k2, jj) in enumerate(exps0) if jj == j and k2 == kb and ("e", n) not in late]
        nm = [f"v_sub_f32 v{vNM(j)+r}, 0, v{t}" for r in range(4)]
        fill = {8: [f"v_max3_f32 v{t}, v{s0}, v{s0+1}, v{s0+2}", f"v_max_f32 v{t}, v{t}, v{s0+3}"],
                9: [f"v_mov_b32 v{t+1}, v{t}", "s_nop 0"], 10: [f"v_permlane16_swap_b32 v{t}, v{t+1}", f"v_max_f32 v{t}, v{t}, v{t+1}"],
                11: [f"v_mov_b32 v{t+1}, v{t}", "s_nop 0"], 12: [f"v_permlane32_swap_b32 v{t}, v{t+1}", f"v_max_f32 v{t}, v{t}, v{t+1}"],
                13: sub(0)[:2], 14: sub(0)[2:], 15: sub(1)}
        for kb in range(4):
            for s in range(4):
                d = vS(kb, j)
                A(f"{MF} {V4(d)}, {A4(aLAST + 16 * kb + 4 * s)}, {V4(vQ(j,s))}, {'0' if s == 0 else V4(d)}")
                if (kb, s) == (1, 1):
                    if cfg.pw: issue(1)
                    else: A("s_nop 2")
                for y in fill.get(4 * kb + s, []): A(y)
        for y in ex(0) + sub(2) + ex(1): A(y)
        if cfg.pw: issue(1)
        for y in sub(3) + ex(2) + ex(3) + nm: A(y)
        for n, (y, kb, jj) in enumerate(cvts0):
            if jj == j and ("c", n) not in late: A(y)
    assert npc[0] == 4 * 5 + cfg.lead
    for r in list(range(0, 12, 2)) + [22]: A(f"v_mov_b64 {V2(t+r)}, 0")
    if cfg.ramp: A(f"s_mov_b32 s72, {cfg.ramp[0]}")
    if cfg.hold: A(f"s_mov_b32 s72, {cfg.hold[1]}")
    if cfg.trace:
        A("s_mov_b32 s95, 0")
        A("s_memrealtime s[96:97]"); A("s_waitcnt lgkmcnt(0)")
    stamp(cfg, A, 2)
    pro = L[code0:]
    odd, even, last = [], [], []
    emit_slots(cfg, steps[0][0], even.append)
    sl1 = steps[1][0]
    sl1[-1].scalar.append(f"s_cmp_lt_u32 s{sK}, 262144")
    emit_slots(cfg, sl1, odd.append)
    stubs = []
    for body in (even, odd):
        out = []
        for x in body:
            if x.startswith("@early"):
                loc = int(x.split()[1])
                if gates:
                    out += ["s_lshr_b64 s[48:49], s[48:49], 2", f"s_cbranch_scc1 L_early{loc}", f"L_back{loc}:"]
                    stubs += [f"L_early{loc}:", "s_and_b32 s33, s48, 3"]
                    if cfg.extra:
                        pre, ld, post = dma_piece(cfg, 20)
                        stubs += [f"s_cbranch_scc0 L_done{loc}", f"L_more{loc}:", pre[0][0], "s_sub_u32 s33, s33, 1"] + ([] if cfg.nodma else [ld])
                        stubs += [y for r in post for y in r] + ["s_cmp_lg_u32 s33, 0", f"s_cbranch_scc1 L_more{loc}", f"L_done{loc}:",
                                                                 f"s_waitcnt vmcnt({cfg.lead})", f"s_branch L_back{loc}"]
                        if cfg.gw != 4:
                            k = stubs.index(f"L_done{loc}:")
                            stubs[k:k] = [f"s_waitcnt vmcnt({cfg.gw}) lgkmcnt(0)", f"s_branch L_bar{loc}"]
                    else:
                        for n in range(1, 4):
                            stubs += [f"s_cmp_lt_u32 s33, {n}", f"s_cbranch_scc1 L_back{loc}", f"s_waitcnt vmcnt({max(0, cfg.lead - n)})"]
                        stubs.append(f"s_branch L_back{loc}")
            else:
                out.append(x)
        body[:] = out
    if stubs:
        A("s_branch L_loop")
        L.extend(stubs)
    A(".p2align 6")
    A("L_loop:")
    L.extend(even)
    L.extend(odd)
    A("s_cbranch_scc1 L_loop")
    tail0 = len(L)
    A("L_last:")
    L.extend(ts(cfg, 0))
    for p in range(4 - cfg.net):
        pre, ld, post = dma_piece(cfg, 20)
        A(pre[0][0]); A("s_nop 0")
        if not cfg.nodma: A(ld)
        if p < 3 - cfg.net:
            for r in post[:2]: A(r[0])
    pstep = build_step(cfg, 0, peeled=(8 - cfg.net, 4))
    emit_slots(cfg, pstep[0], A)
    A("L_tail:")
    if cfg.trace:
        for y in TR_PRE: A(y)
    stamp(cfg, A, 3)
    exps1, cvts1 = sm_ops(1)
    rest = [exps1[n][0] for k, n in pstep[2] if k == "e"] + [cvts1[n][0] for k, n in pstep[2] if k == "c"]
    t = vS(0, 0)
    x = vNM(0)
    rest += [f"v_accvgpr_read_b32 v{x+1+n}, a{aADDR+n}" for n in range(5)]
    rl = lambda j: t + 4 + 4 * j
    ob = vP(0, 0, 0)
    def recip_ops(check):
        o = [f"v_accvgpr_read_b32 v{t+j}, a{aL(j)}" for j in range(3)]
        if check:
            o += [f"v_add_f32 v{t+3}, v{t}, v{t+1}", f"v_add_f32 v{t+3}, v{t+3}, v{t+2}", f"v_cmp_ngt_f32 vcc, s{sTHR}, v{t+3}"]
        o += [f"v_rcp_f32 v{t+j}, v{t+j}" for j in range(3)]
        d = [f"ds_write_b32 v{vLW}, v{t+j} offset:{LOFF + 64 * j}" for j in range(3)]
        d += [f"ds_read_b128 {V4(rl(j))}, v{vLR} offset:{LOFF + 64 * j}" for j in range(3)]
        return o, d
    def scale_ops(j, packed):
        if packed:
            return [f"v_pk_mul_f32 {V2(vO(j,b)+h)}, {V2(vO(j,b)+h)}, {V2(rl(j)+h)}" for h in (0, 2) for b in range(8)]
        return [f"v_mul_f32 v{vO(j,b)+r}, v{vO(j,b)+r}, v{rl(j)+r}" for r in range(4) for b in range(8)]
    def wreg(j, r): return t + 16 + 4 * ((j * 4 + r) % 8)
    def cvt_ops(j, r):
        return [f"v_cvt_pk_bf16_f32 v{wreg(j,r)+h}, v{vO(j,2*h)+r}, v{vO(j,2*h+1)+r}" for h in range(4)]
    def oreg(j, r): return (ob + (j * 4 + r) * 4) if j < 1 else (vQ(0, 0) + (j * 4 + r) * 4)
    def lds_ops(j, r):
        o = (j * 4 + r) * ESTR
        return [f"ds_write_b128 v{vEW}, {V4(wreg(j,r))} offset:{o}",
                f"ds_read_b64_tr_b16 {V2(oreg(j,r))}, v{vER} offset:{o}",
                f"ds_read_b64_tr_b16 {V2(oreg(j,r)+2)}, v{vER} offset:{o + 64}"]
    def store_op(j, r):
        off = f" offset:{r * 256}" if r else ""
        return f"buffer_store_dwordx4 {V4(oreg(j,r))}, v{vOST}, {SRD_O}, s{sQ+j} offen{off} {cfg.stflags}".rstrip()
    def last_order(j):
        bs = range(8) if j % 2 == 0 else range(7, -1, -1)
        out = []
        for n, b in enumerate(bs):
            out += [(b, k) for k in ([0, 1] if n % 2 == 0 else [1, 0])]
        return out
    def aV(b, k): return aLAST + 8 * b + 4 * k
    def last_slots(j):
        return [Slot(f"{MF} {V4(vO(j,b))}, {V4(vP(1,j,k))}, {A4(aV(b,k))}, {V4(vO(j,b))}", ("L", b, k)) for b, k in last_order(j)]
    head = pv_group(3, 1, 0) + sum_group(1) + last_slots(0)
    head[0].pre = ts(cfg, 1) + ["s_waitcnt lgkmcnt(4)"]
    head[18].pre = ts(cfg, 3)
    head[0].scalar.append(f"s_mul_i32 s{sQ}, s{sW}, 12288")
    head[1].scalar.append(f"s_add_u32 s{sQ+1}, s{sQ}, 4096")
    head[2].scalar.append(f"s_add_u32 s{sQ+2}, s{sQ}, 8192")
    q = 0
    while rest:
        c = 8 if "v_exp" in rest[0] else 4
        if head[q].cap() >= c: head[q].valu.append(rest.pop(0))
        else: q += 1
    assert q < 10
    head[5].scalar.append("s_waitcnt lgkmcnt(0)")
    rdpos = list(range(max(q + 1, 6), max(q + 1, 6) + 16))
    for pos, (b, k) in zip(rdpos, last_order(0)):
        head[pos].ds += v_read(aV(b, k), vVB, b, k, TILE)
    head[rdpos[0]].pre = ["s_waitcnt vmcnt(0)", "s_barrier"] + ts(cfg, 2)
    if cfg.st1 == 1: stamp(cfg, head[rdpos[0]].pre.append, 1)
    for pos in range(rdpos[0], 33):
        issued = sum(1 for p2 in rdpos if p2 < pos)
        n = pos - 17
        assert issued > n
        allow = 2 * issued if n < 0 else 2 * (issued - n - 1)
        if n >= 0 or allow > 12: head[pos].scalar.append(f"s_waitcnt lgkmcnt({min(allow, 12)})")
    rv, rdd = recip_ops(True)
    q = max(rdpos[-1] + 1, 22)
    while rv:
        c = 8 if "v_rcp" in rv[0] else 4
        if 8 - sum(8 if "v_rcp" in y else 4 for y in head[q].valu) >= c: head[q].valu.append(rv.pop(0))
        else: q += 1
    assert q <= 32, q
    emit_slots(cfg, head[:q + 1], A)
    hrest = head[q + 1:]
    for sl in hrest:
        sl.scalar = [("s_waitcnt lgkmcnt(0)" if y.startswith("s_waitcnt") else y) for y in sl.scalar]
    body = hrest + last_slots(1) + last_slots(2)
    nh = len(hrest)
    body[0].scalar = ["s_waitcnt lgkmcnt(0)"]
    for sl in body[1:nh]: sl.scalar = []
    body[0].ds += rdd[0:3]; body[1].ds += rdd[3:6]
    first = max(nh + 1, 6)
    body[2].scalar.append("s_branch L_slow" if cfg.force_slow else "s_cbranch_vccnz L_slow")
    body[first].scalar.append("s_waitcnt lgkmcnt(0)")
    rows = [(j, r) for j in range(3) for r in range(4)]
    span = (len(body) - first) / 8.0
    for n in range(8):
        j, r = rows[n]
        a0, a1 = first + int(round(n * span)), first + int(round((n + 1) * span))
        if j == 1: a0 = max(a0, nh + 17)
        v = scale_ops(j, False)[8 * r:8 * r + 8]
        if j == 1: v.reverse()
        v += cvt_ops(j, r)
        for k, y in enumerate(v): body[a0 + k * (a1 - a0) // 12].valu.append(y)
        if n >= 1: body[a0].ds += lds_ops(*rows[n - 1])
        if n >= 2:
            body[a0 + 1].scalar.append("s_waitcnt lgkmcnt(3)")
            body[a0 + 1].ds.append(store_op(*rows[n - 2]))
    body[first + 1].pre = ts(cfg, 4)
    body[nh + 16].pre = ts(cfg, 5)
    mark = len(L)
    emit_slots(cfg, body, A)
    slow_at = next(n for n in range(mark, len(L)) if "L_slow" in L[n]) + 1
    if cfg.st1 == 2: stamp(cfg, A, 1)
    L.extend(ts(cfg, 6))
    for y in lds_ops(1, 3): A(y)
    A("s_waitcnt lgkmcnt(3)"); A(store_op(1, 2))
    sc = scale_ops(2, True)
    for y in sc[0:8] + cvt_ops(2, 0): A(y)
    A("s_waitcnt lgkmcnt(0)"); A(store_op(1, 3))
    for y in lds_ops(2, 0) + cvt_ops(2, 1): A(y)
    for y in lds_ops(2, 1) + sc[8:16] + cvt_ops(2, 2): A(y)
    A("s_waitcnt lgkmcnt(3)"); A(store_op(2, 0))
    for y in lds_ops(2, 2) + cvt_ops(2, 3): A(y)
    A("s_waitcnt lgkmcnt(3)"); A(store_op(2, 1))
    for y in lds_ops(2, 3): A(y)
    A("s_waitcnt lgkmcnt(3)"); A(store_op(2, 2))
    A("s_waitcnt lgkmcnt(0)"); A(store_op(2, 3))
    if cfg.wst:
        n = 0
        for q in range(mark, len(L)):
            if L[q].startswith("buffer_store"):
                assert L[q - 1].startswith("s_waitcnt lgkmcnt")
                if n >= cfg.wst: L[q - 1] = L[q - 1].replace("s_waitcnt ", f"s_waitcnt vmcnt({cfg.wst - 1}) ")
                n += 1
    L.extend(ts(cfg, 7))
    if cfg.wbl2:
        A("s_waitcnt vmcnt(0)")
        A("s_barrier")
        A(f"s_cmp_lg_u32 s{sW}, 0")
        A("s_cbranch_scc1 L_fin")
        A("buffer_wbl2 sc1")
    A("L_fin:")
    if cfg.stamps:
        stamp(cfg, A, 4)
        A("s_waitcnt vmcnt(0)")
        stamp(cfg, A, 5)
        A("s_mov_b32 s42, 0x100000"); A("s_mov_b32 s43, 0x20000")
        A("s_getreg_b32 s62, hwreg(HW_REG_XCC_ID)")
        A("s_getreg_b32 s63, hwreg(HW_REG_HW_ID)")
        A("s_and_b32 s62, s62, 15"); A("s_and_b32 s63, s63, 0xff00"); A("s_or_b32 s62, s62, s63")
        A("s_waitcnt lgkmcnt(0)")
        for n in range(6): A(f"v_mov_b32 v{12+n}, s{50+2*n}")
        A("s_sub_u32 s66, s66, s64"); A("v_mov_b32 v18, s62"); A("v_mov_b32 v19, s66")
        A(f"s_lshl_b32 s37, s2, 2"); A(f"s_add_u32 s37, s37, s{sW}"); A("s_lshl_b32 s37, s37, 5")
        A("v_mov_b32 v10, s37")
        A(f"buffer_store_dwordx4 v[12:15], v10, {SRD_WS}, 0 offen")
        A(f"buffer_store_dwordx4 v[16:19], v10, {SRD_WS}, 0 offen offset:16")
        if cfg.trace:
            A("v_mbcnt_lo_u32_b32 v21, -1, 0"); A("v_mbcnt_hi_u32_b32 v21, -1, v21"); A("v_lshlrev_b32 v21, 2, v21")
            A("s_lshl_b32 s37, s37, 3"); A("s_add_u32 s37, s37, 0x20000")
            A(f"buffer_store_dword v3, v21, {SRD_WS}, s37 offen")
        if cfg.tst or cfg.pst:
            for n in range(8): A(f"v_mov_b32 v{20+n}, s{76+2*n}")
            A("s_mov_b32 s37, 0x10000")
            A(f"buffer_store_dwordx4 v[20:23], v10, {SRD_WS}, s37 offen")
            A(f"buffer_store_dwordx4 v[24:27], v10, {SRD_WS}, s37 offen offset:16")
    if cfg.enc is not None:
        stamp(cfg, A, 4)
        A("s_waitcnt vmcnt(0)")
        stamp(cfg, A, 5)
        A("s_waitcnt lgkmcnt(0)")
        if cfg.encwg is not None:
            A(f"s_cmp_lg_u32 s2, {cfg.encwg}")
            A("s_cbranch_scc1 L_end")
        A(f"s_sub_u32 s38, s{50+2*cfg.enc[1]}, s{50+2*cfg.enc[0]}")
        A("s_mul_i32 s38, s38, 10")
        A("s_add_u32 s38, s38, 10000")
        A("L_spin:")
        A("s_sleep 4")
        A("s_memrealtime s[72:73]")
        A("s_waitcnt lgkmcnt(0)")
        A("s_sub_u32 s72, s72, s50")
        A("s_cmp_lt_u32 s72, s38")
        A("s_cbranch_scc1 L_spin")
    A("L_end:")
    A("s_endpgm")
    tail = L[tail0:]
    slow0 = len(L)
    A("L_slow:")
    A("s_waitcnt vmcnt(0) lgkmcnt(0)")
    A("s_nop 7")
    vM, vAL, vAT, vMX = vP(1, 0, 0), vP(1, 0, 0) + 4, vP(1, 0, 0) + 8, vS(2, 0)
    HALF = 8 * BS
    A(f"v_accvgpr_read_b32 v{vDMA}, a{aADDR+5}")
    A(f"v_add_u32 v{vKB}, s{sPRIV}, v{vKB}")
    A(f"s_sub_u32 s38, s{sPRIV}, {VRING + 2 * TILE}")
    A(f"v_add_u32 v{vVB}, s38, v{vVB}")
    for r in range(0, 96, 2): A(f"v_mov_b64 {V2(vO(0,0)+r)}, 0")
    for r in range(12): A(f"v_accvgpr_write_b32 a{aL(0)+r}, 0")
    for j in range(3): A(f"v_mov_b32 v{vM+j}, 0xff7fffff")
    A(f"s_mov_b32 s{sK}, 0")
    slowl0 = len(L)
    A("L_slow_loop:")
    for srd in (SRD_K, SRD_V):
        for a in range(8):
            A(f"s_add_u32 m0, s{sPRIV}, {a * BS}")
            A(f"s_add_u32 s38, s{sK}, {a * 1024 + (vb if srd == SRD_V else 0)}")
            A(f"buffer_load_dwordx4 v{vDMA}, {srd}, s38 offen lds")
        A("s_waitcnt vmcnt(0)")
        if srd == SRD_K:
            for kb in range(2):
                for s in range(4): A(k_read(16 * kb + 4 * s, vKB, kb, s))
            A("s_waitcnt lgkmcnt(0)")
    for b in range(8):
        for y in v_read(32 + 4 * b, vVB, b, 0): A(y)
        if b == 3: A("s_waitcnt lgkmcnt(0)")
    for kb in range(2):
        for j in range(3):
            for s in range(4):
                d = vS(kb, j)
                A(f"{MF} {V4(d)}, {A4(16 * kb + 4 * s)}, {V4(vQ(j,s))}, {'0' if s == 0 else V4(d)}")
    A("s_nop 7")
    for j in range(3):
        s0, s1 = vS(0, j), vS(1, j)
        A(f"v_max3_f32 v{vMX+j}, v{s0}, v{s0+1}, v{s0+2}")
        A(f"v_max3_f32 v{vMX+j}, v{vMX+j}, v{s0+3}, v{s1}")
        A(f"v_max3_f32 v{vMX+j}, v{vMX+j}, v{s1+1}, v{s1+2}")
        A(f"v_max3_f32 v{vMX+j}, v{vMX+j}, v{s1+3}, v{vM+j}")
    xmax(A, [vMX + j for j in range(3)], [vMX + 4 + j for j in range(3)])
    for j in range(3): A(f"v_sub_f32 v{vAL+j}, v{vM+j}, v{vMX+j}")
    for j in range(3): A(f"v_exp_f32 v{vAL+j}, v{vAL+j}")
    for j in range(3): A(f"v_mov_b32 v{vM+j}, v{vMX+j}")
    A("s_waitcnt lgkmcnt(0)")
    for j in range(3): A(f"ds_write_b32 v{vLW}, v{vAL+j} offset:{LOFF + 64 * j}")
    A("s_waitcnt lgkmcnt(0)")
    for j in range(3): A(f"ds_read_b128 {V4(vAT + 4 * j)}, v{vLR} offset:{LOFF + 64 * j}")
    for j in range(3):
        for r in range(4):
            A(f"v_accvgpr_read_b32 v{vMX+8}, a{aL(j)+r}")
            A(f"v_mul_f32 v{vMX+8}, v{vMX+8}, v{vAL+j}")
            A(f"v_accvgpr_write_b32 a{aL(j)+r}, v{vMX+8}")
    for kb in range(2):
        for j in range(3):
            for r in range(4): A(f"v_sub_f32 v{vS(kb,j)+r}, v{vS(kb,j)+r}, v{vM+j}")
    for y, kb, j in exps0:
        if kb < 2: A(y)
    A("s_waitcnt lgkmcnt(0)")
    for y, kb, j in cvts0:
        if kb < 2: A(y)
    for j in range(3):
        for b in range(8):
            for r in range(4): A(f"v_mul_f32 v{vO(j,b)+r}, v{vO(j,b)+r}, v{vAT+4*j+r}")
    A("s_nop 1")
    for j in range(3): A(f"{MF} {A4(aL(j))}, {A4(aONE)}, {V4(vP(0,j,0))}, {A4(aL(j))}")
    for b in range(8):
        for j in range(3):
            A(f"{MF} {V4(vO(j,b))}, {V4(vP(0,j,0))}, {A4(32 + 4 * b)}, {V4(vO(j,b))}")
    A(f"s_add_u32 s{sK}, s{sK}, 8192")
    A(f"s_cmp_lt_u32 s{sK}, 262144")
    A("s_cbranch_scc1 L_slow_loop")
    slowl1 = len(L)
    A("s_nop 7")
    rv, rdd = recip_ops(False)
    for y in rv + ["s_nop 0"] + rdd + ["s_waitcnt lgkmcnt(0)"]: A(y)
    A(f"s_add_u32 s{sQ+1}, s{sQ}, 4096"); A(f"s_add_u32 s{sQ+2}, s{sQ}, 8192")
    for j in range(3):
        for y in scale_ops(j, True): A(y)
        for r in range(4):
            for y in cvt_ops(j, r) + lds_ops(j, r): A(y)
        A("s_waitcnt lgkmcnt(0)")
        for r in range(4): A(store_op(j, r))
    A("s_branch L_fin")
    errs = check_hazards(pro + even + odd + even + odd + tail, "fast")
    errs += check_hazards(L[tail0:slow_at] + L[slow0:slowl1] + L[slowl0:], "slow")
    errs += check_lgkm(pro + even + odd + even + odd + tail, "fast")
    errs += check_lgkm(L[tail0:slow_at] + L[slow0:slowl1] + L[slowl0:], "slow")
    if errs:
        raise RuntimeError("\n".join(errs))
    A('.section .rodata,"a"')
    A(".p2align 6")
    A(f".amdhsa_kernel {NAME}")
    A(f"  .amdhsa_next_free_vgpr {256 + NAGPR}")
    A("  .amdhsa_next_free_sgpr 102")
    A("  .amdhsa_accum_offset 256")
    A("  .amdhsa_group_segment_fixed_size 0")
    A("  .amdhsa_kernarg_size 48")
    A("  .amdhsa_user_sgpr_count 2")
    A("  .amdhsa_user_sgpr_kernarg_segment_ptr 1")
    A("  .amdhsa_system_sgpr_workgroup_id_x 1")
    A("  .amdhsa_float_denorm_mode_32 3")
    A(".end_amdhsa_kernel")
    out = []
    for l in L:
        out.append(l if (l.endswith(":") or l.startswith((".", ";", " "))) else "    " + l)
    return "\n".join(out) + "\n"

if __name__ == "__main__":
    kw = {}
    for a in sys.argv[1:]:
        k, v = a.split("=", 1)
        try: v = eval(v)
        except Exception: pass
        kw[k] = v
    sys.stdout.write(gen(Cfg(**kw)))
```

```python
import re

def regs(tok):
    tok = tok.strip()
    tok = tok.replace("-", "") if tok.startswith("-") else tok
    m = re.fullmatch(r"abs\((.*)\)|\|(.*)\|", tok)
    if m: tok = m.group(1) or m.group(2)
    m = re.fullmatch(r"([vas])\[(\d+):(\d+)\]", tok)
    if m: return {f"{m.group(1)}{i}" for i in range(int(m.group(2)), int(m.group(3)) + 1)}
    m = re.fullmatch(r"([vas])(\d+)", tok)
    if m: return {tok}
    if tok in ("vcc", "m0", "exec"): return {tok}
    return set()

TRANS = ("v_exp_f32", "v_log_f32", "v_rcp_f32", "v_rsq_f32", "v_sqrt_f32")

class Ins:
    def __init__(self, text):
        self.text = text
        t = text.split(";")[0].strip()
        self.label = t.endswith(":")
        self.directive = t.startswith(".") and not self.label
        self.op = t.split()[0] if t and not self.label else ""
        rest = t[len(self.op):].strip() if self.op else ""
        ops = [o.strip() for o in rest.split(",")] if rest else []
        if ops:
            last = ops[-1].split()
            self.mods = last[1:]
            ops[-1] = last[0]
        else:
            self.mods = []
        self.ops = ops
        op = self.op
        self.mfma = op.startswith("v_mfma")
        self.valu = op.startswith("v_") and not self.mfma
        self.trans = any(op.startswith(x) for x in TRANS)
        self.ds = op.startswith("ds_")
        self.vmem = op.startswith("buffer_") or op.startswith("global_")
        self.salu = op.startswith("s_")
        self.dma = self.vmem and "lds" in self.mods
        self.w, self.r = set(), set()
        self.srcc = set()
        if self.label or self.directive or not op or op == "buffer_wbl2":
            return
        if self.mfma:
            self.w = regs(ops[0]); self.srcc = regs(ops[3]); self.ab = regs(ops[1]) | regs(ops[2]); self.r = self.ab | self.srcc
        elif op.startswith(("v_permlane", "v_swap")):
            self.w = regs(ops[0]) | regs(ops[1]); self.r = set(self.w)
        elif op.startswith("v_cmp"):
            self.w = regs(ops[0]); self.r = set().union(*[regs(o) for o in ops[1:]])
        elif self.valu:
            self.w = regs(ops[0]); self.r = set().union(*[regs(o) for o in ops[1:]]) if len(ops) > 1 else set()
            if op.startswith("v_fmac"): self.r |= self.w
        elif op.startswith("ds_read"):
            self.w = regs(ops[0]); self.r = regs(ops[1]) if len(ops) > 1 else set()
        elif op.startswith("ds_write"):
            self.r = set().union(*[regs(o) for o in ops])
        elif self.dma:
            self.r = set().union(*[regs(o) for o in ops]) | {"m0"}
        elif op.startswith(("buffer_load", "global_load")):
            self.w = regs(ops[0]); self.r = set().union(*[regs(o) for o in ops[1:]])
        elif op.startswith("buffer_store"):
            self.r = set().union(*[regs(o) for o in ops]); self.data = regs(ops[0])
        elif self.salu:
            if op.startswith(("s_cmp", "s_bitcmp", "s_waitcnt", "s_nop", "s_barrier", "s_branch", "s_cbranch", "s_endpgm", "s_setprio")):
                self.r = set().union(*[regs(o) for o in ops]) if ops else set()
            else:
                self.w = regs(ops[0]); self.r = set().union(*[regs(o) for o in ops[1:]]) if len(ops) > 1 else set()
    def states(self):
        if self.label or self.directive or not self.op: return 0
        if self.op == "s_nop": return int(self.ops[0], 0) + 1
        return 1

def passes(i):
    return 8 if "32x32" in i.op else 4

def check_hazards(lines, name=""):
    ins = [Ins(l) for l in lines]
    ins = [i for i in ins if i.states() > 0]
    errs = []
    for n, c in enumerate(ins):
        dist = 0
        for p in reversed(ins[max(0, n - 24):n]):
            need = 0
            v = lambda s: {x for x in s if x[0] in "va" and x not in ("vcc",)}
            if p.valu and c.mfma and (v(p.w) & c.r): need = max(need, 2)
            if p.mfma:
                d = 8 if passes(p) == 4 else 12
                if c.mfma:
                    if p.w & c.ab: need = max(need, d)
                    if (p.w & c.srcc) and p.w != c.srcc: need = max(need, d - 2)
                    if (p.w & c.w) and not (p.w & c.srcc): need = max(need, d)
                elif (c.valu or c.ds or c.vmem) and (p.w & (c.r | c.w)): need = max(need, d)
                if c.valu and (p.srcc & c.w): need = max(need, 3 if passes(p) == 4 else 7)
            if p.trans and c.valu and not c.trans and (p.w & c.r): need = max(need, 1)
            if p.valu and c.op.startswith("v_permlane") and (v(p.w) & c.r): need = max(need, 2)
            if p.valu and c.op.startswith(("v_readfirstlane", "v_readlane")) and (v(p.w) & c.r): need = max(need, 1)
            if p.valu and "dpp" in c.op and (v(p.w) & c.r): need = max(need, 2)
            if p.salu and "m0" in p.w and c.dma: need = max(need, 1)
            sw = {x for x in p.w if x[0] == "s" or x == "vcc"}
            if p.valu and c.vmem and (sw & c.r): need = max(need, 5)
            if p.valu and c.valu and (sw & c.r): need = max(need, 2)
            if p.op.startswith("buffer_store_dwordx4") and (p.data & c.w): need = max(need, 2 if c.valu else 1)
            if need > dist:
                errs.append(f"{name}: need {need} have {dist}: [{p.text}] -> [{c.text}]")
            dist += p.states()
    return errs

def check_lgkm(lines, name=""):
    errs, q = [], []
    for l in lines:
        i = Ins(l)
        if i.states() == 0: continue
        if i.op == "s_waitcnt":
            m = re.search(r"lgkmcnt\((\d+)\)", l)
            if m:
                n = int(m.group(1))
                q = q[len(q) - n:] if n < len(q) else q
                if n == 0: q = []
            continue
        for w, t in q:
            if w & (i.r | i.w): errs.append(f"{name}: [{t}] not waited before [{l}]")
        if i.ds:
            q.append((set(i.w), l))
            if len(q) > 15: errs.append(f"{name}: {len(q)} LDS ops outstanding at [{l}]")
    return errs

VOP3_ONLY = ("v_mfma", "v_cvt_pk_bf16_f32", "v_max3", "v_lshl_add_u32", "v_accvgpr_read", "v_accvgpr_write", "v_pk_", "v_bfe_u32",
             "v_writelane", "v_mbcnt", "v_fma_f32", "v_perm_b32")
FLEX = ("v_exp_f32", "v_rcp_f32", "v_mul_f32", "v_add_f32", "v_sub_f32", "v_max_f32", "v_add_u32", "v_mov_b32", "v_lshlrev_b32", "v_and_b32")

def is_literal(tok):
    tok = tok.strip()
    if re.fullmatch(r"-?(0x[0-9a-fA-F]+|\d+)", tok):
        v = int(tok, 0)
        return not (-16 <= v <= 64)
    return bool(re.fullmatch(r"L_\w+-L_\w+", tok))

def size_of(line):
    i = Ins(line)
    if i.states() == 0: return 0
    op = i.op
    if i.ds or i.vmem or op.startswith(("s_load", "s_memtime", "s_memrealtime")): return 8
    if op.endswith("_e64") or op.startswith(VOP3_ONLY): return 8
    if op in ("s_waitcnt", "s_nop", "s_barrier", "s_endpgm", "s_sleep") or op.startswith(("s_branch", "s_cbranch", "s_getreg")): return 4
    return 8 if any(is_literal(o) for o in i.ops) else 4

def flexible(line):
    i = Ins(line)
    return i.op in FLEX and size_of(line) == 4

def align_stream(lines, start=0):
    INF = 10 ** 9
    cost = {start % 32: 0}
    back = []
    for l in lines:
        sz = size_of(l)
        opts = [sz] + ([8] if flexible(l) else [])
        new, bk = {}, {}
        for off, c in cost.items():
            for s in opts:
                c2 = c + (100 if (s == 8 and off == 28) else 0) + (1 if s != sz else 0)
                o2 = (off + s) % 32
                if c2 < new.get(o2, INF): new[o2] = c2; bk[o2] = (off, s)
        cost = new; back.append(bk)
    off = min(cost, key=cost.get)
    left = cost[off] // 100
    out = []
    for l, bk in zip(reversed(lines), reversed(back)):
        off, s = bk[off]
        if s != size_of(l):
            op = l.split()[0]
            l = l.replace(op, op + "_e64", 1)
        out.append(l)
    return out[::-1], left
```

```python
import math, struct, sys
from asmlib import Ins, check_hazards, check_lgkm, align_stream, size_of

NAME = "standalone__mha_softmax__near_ridge_kernel"
BS = 1056
TILE = 16 * BS
KRING = 0
VRING = 2 * TILE
PRIV = 6 * TILE
PRIVSZ = 15616
LDS_BYTES = PRIV + 4 * PRIVSZ
ESTR = 1280
LOFF = 12 * ESTR

def f2u(x): return struct.unpack("<I", struct.pack("<f", x))[0]
C_SCALE = f2u(math.log2(math.e) / math.sqrt(128.0))
L_MAX = f2u(2.0 ** 40)

vDMA, vKB, vVB, vVX = 0, 1, 2, 3
def vO(j, b): return 4 + (j * 8 + b) * 4
def vS(kb, j): return 100 + (kb * 3 + j) * 4
def vP(par, j, k): return 148 + par * 24 + (j * 2 + k) * 4
def vNM(j): return 196 + j * 4
def vQ(j, s): return 208 + (j * 4 + s) * 4
def aF(st, i): return st * 16 + i * 4
aONE = 64
def aL(j): return 68 + j * 4
aADDR = 80
aLAST = 88
NAGPR = 152
def V4(r): return f"v[{r}:{r+3}]"
def V2(r): return f"v[{r}:{r+1}]"
def A4(r): return f"a[{r}:{r+3}]"
def A2(r): return f"a[{r}:{r+1}]"
sW, sWK, sPRIV, sK, sTHR, sQ = 3, 28, 29, 32, 36, 37
sV, sWV = 30, 31
sINC, sALT, sSEL, sCI = 44, 46, 68, 70
sWEND, sW0V, sDR, sTOG = 92, 93, 94, 99
SRD_Q, SRD_K, SRD_V, SRD_O, SRD_WS = "s[12:15]", "s[16:19]", "s[20:23]", "s[24:27]", "s[40:43]"
MF = "v_mfma_f32_16x16x32_bf16"

class Cfg:
    extra = (0, 2, 1, 1, 1, 1, 0, 1)
    drain = (6, 9, 12)
    ldflags = "nt"
    stflags = "nt"
    dma_slots = (1, 13, 25, 37)
    v_slots = None
    rd_slots = (0, 2, 4, 6)
    rd_last = None
    vwait = 4
    bw = 2
    head = 0
    warm = True
    pw = 6
    align = False
    page = True
    stamps = False
    st1 = 0
    tst = False
    pst = False
    trace = False
    enc = None
    encwg = None
    force_slow = False
    oob = False
    nodma = False
    nobar = False
    lead = 4
    mix = True
    spread = True
    def __init__(self, **kw):
        for k, v in kw.items():
            assert hasattr(Cfg, k), k
            setattr(self, k, v)
        self.net = sum(self.extra) - len(self.drain)
        assert 4 <= self.net <= 8
        b = 0
        for p in range(28):
            if p % 2 == 1 and not any(self.extra[p:]): assert b >= 4, (p, b)
            b += self.extra[p] if p < len(self.extra) else 0
            assert b <= 8
            if p % 2 == 1 and p // 2 in self.drain: b -= 1

def group(g):
    if g == 0: return "K"
    if g <= 3: return "Q"
    return "K" if (g - 4) % 2 == 0 else "V"

vQD = vP(1, 2, 1) + 3

def ld_ins(cfg, srd, so, off=0, va=vDMA):
    o = f" offset:{off}" if off else ""
    return f"buffer_load_dwordx4 v{va}, {srd}, s{so} offen{o} {cfg.ldflags} lds".replace("  ", " ")

def v_post(cfg, inc=None):
    inc = inc or ("1024" if cfg.mix else "4096", str(4 * BS))
    return ([[f"s_add_u32 s{sV}, s{sV}, {inc[0]}"], [f"s_add_u32 s{sWV}, s{sWV}, {inc[1]}"]]
            + ([[f"s_or_b32 s{sV}, s{sV}, 0x3000"]] if cfg.mix else [])
            + [[f"s_cmp_eq_u32 s{sWV}, s{sWEND}", f"s_cselect_b32 s{sWV}, s{sW0V}, s{sWV}"]])

def dma_piece(cfg, p, drainable=False):
    g, i = divmod(p, 4)
    kind = group(g)
    if kind == "Q":
        n = (g - 1) * 4 + i
        return [[f"s_add_u32 m0, s{sPRIV}, {n * BS}"]], ld_ins(cfg, SRD_Q, sQ, 0, vQD), [[f"s_add_u32 s{sQ}, s{sQ}, 1024"]]
    if kind == "K":
        t = 0 if g == 0 else (g - 4) // 2 + 1
        if cfg.mix:
            return ([[f"s_add_u32 m0, s{sWK}, {KRING + (t & 1) * TILE + 4 * i * BS - 1024 * i}"]], ld_ins(cfg, SRD_K, sK, 1024 * i),
                    [[f"s_add_u32 s{sK}, s{sK}, 16384"]] if i == 3 else [])
        return [[f"s_add_u32 m0, s{sWK}, {KRING + (t & 1) * TILE + 4 * i * BS}"]], ld_ins(cfg, SRD_K, sK), [[f"s_add_u32 s{sK}, s{sK}, 4096"]]
    if drainable:
        pre = [[f"s_bitcmp1_b32 s{sDR}, 0", f"s_cselect_b64 s[{sSEL}:{sSEL+1}], s[{sALT}:{sALT+1}], s[{sV}:{sWV}]",
                f"s_cselect_b64 s[{sCI}:{sCI+1}], 0, s[{sINC}:{sINC+1}]"], [f"s_mov_b32 m0, s{sSEL+1}"]]
        return pre, ld_ins(cfg, SRD_V, sSEL), v_post(cfg, (f"s{sCI}", f"s{sCI+1}")) + [[f"s_lshr_b32 s{sDR}, s{sDR}, 1"]]
    return [[f"s_mov_b32 m0, s{sWV}"]], ld_ins(cfg, SRD_V, sV), v_post(cfg)

def k_read(dst, base, kb, s, off=0):
    return f"ds_read_b128 {A4(dst)}, v{base} offset:{off + kb * 4 * BS + s * 256}"

def v_read(dst, base, b, k, off=0):
    o = off + 8 * k * BS + (b >> 1) * 256 + (b & 1) * 32
    return [f"ds_read_b64_tr_b16 {A2(dst)}, v{base} offset:{o}",
            f"ds_read_b64_tr_b16 {A2(dst + 2)}, v{base} offset:{o + 4 * BS}"]

def qk_order(kb):
    js = [0, 1, 2] if kb % 2 == 0 else [2, 1, 0]
    out = []
    for n, j in enumerate(js):
        up = (kb * 3 + n) % 2 == 0
        out += [(j, s) for s in ([0, 1, 2, 3] if up else [3, 2, 1, 0])]
    return out

def pv_order(g):
    out = []
    for bb in range(2):
        b = 2 * g + bb
        js = [0, 1, 2] if b % 2 == 0 else [2, 1, 0]
        for n, j in enumerate(js):
            up = (b * 3 + n) % 2 == 0
            out += [(b, j, k) for k in ([0, 1] if up else [1, 0])]
    return out

class Slot:
    def __init__(self, mfma, frag=None):
        self.mfma, self.frag = mfma, frag
        self.pre, self.scalar, self.ds, self.dma, self.valu = [], [], [], [], []
        self.dsfrag = []
    def cap(self):
        return 8 - 4 * len(self.ds) - 8 * len(self.dma) - 4 * max(0, len(self.scalar) - 1) - sum(8 if "v_exp" in v else 4 for v in self.valu)

def qk_group(kb, st):
    sl, seen = [], set()
    for j, s in qk_order(kb):
        d = vS(kb, j)
        c = V4(d) if j in seen else V4(vNM(j))
        seen.add(j)
        sl.append(Slot(f"{MF} {V4(d)}, {A4(aF(st, s))}, {V4(vQ(j, s))}, {c}", (st, s)))
    return sl

def pv_group(g, st, par):
    return [Slot(f"{MF} {V4(vO(j, b))}, {V4(vP(par, j, k))}, {A4(aF(st, (b & 1) * 2 + k))}, {V4(vO(j, b))}", (st, (b & 1) * 2 + k))
            for b, j, k in pv_order(g)]

def sum_group(par):
    return [Slot(f"{MF} {A4(aL(j))}, {A4(aONE)}, {V4(vP(par, j, k))}, {A4(aL(j))}") for j in range(3) for k in range(2)]

def first_use(slots):
    out = []
    for s in slots:
        if s.frag not in out: out.append(s.frag)
    return out

def k_reads_for(kb, st, off):
    return [([k_read(aF(st, fr[1]), vKB, kb, fr[1], off)], fr) for fr in first_use(qk_group(kb, st))]

def v_reads_for(g, st, off):
    return [(v_read(aF(st, fr[1]), vVB, 2 * g + (fr[1] >> 1), fr[1] & 1, off), fr) for fr in first_use(pv_group(g, st, 0))]

def sm_ops(par):
    exps, cvts = [], []
    for kb in range(4):
        js = [0, 1, 2] if kb % 2 == 0 else [2, 1, 0]
        for j in js:
            s = vS(kb, j)
            for h in range(2):
                exps += [(f"v_exp_f32 v{s+2*h}, v{s+2*h}", kb, j), (f"v_exp_f32 v{s+2*h+1}, v{s+2*h+1}", kb, j)]
                cvts.append((f"v_cvt_pk_bf16_f32 v{vP(par, j, kb >> 1) + 2 * (kb & 1) + h}, v{s+2*h}, v{s+2*h+1}", kb, j))
    return exps, cvts

TR_OFF = 60000
TR_PRE = ["s_mov_b32 m0, s95", "s_add_u32 s95, s95, 1", "v_writelane_b32 v3, s96, m0"]

def build_step(cfg, par, peeled=None):
    groups = [pv_group(3, 1, par ^ 1), qk_group(0, 0), qk_group(1, 1), qk_group(2, 0), qk_group(3, 1),
              sum_group(par), pv_group(0, 0, par), pv_group(1, 1, par), pv_group(2, 0, par)]
    ko, vo = KRING + (par ^ 1) * TILE, par * TILE
    reads = [k_reads_for(0, 0, ko), k_reads_for(1, 1, ko), k_reads_for(2, 0, ko), k_reads_for(3, 1, ko), v_reads_for(0, 0, vo),
             [], v_reads_for(1, 1, vo), v_reads_for(2, 0, vo), v_reads_for(3, 1, vo)]
    slots, gs = [], []
    for g, rd in zip(groups, reads):
        gs.append(len(slots))
        for pos, (ins, fr) in zip(cfg.rd_last if (cfg.rd_last and len(gs) == 9) else cfg.rd_slots, rd):
            g[pos].ds += ins
            g[pos].dsfrag += [fr] * len(ins)
        slots += g
    n = len(slots)
    issued = []
    done = -1
    waits = {}
    for rep in range(2):
        for i, s in enumerate(slots):
            if i == 0: done = len(issued) - 1
            if s.frag is not None:
                need = max((q for q, fr in enumerate(issued) if fr == s.frag), default=-1)
                if need > done:
                    nxt = slots[(i + 1) % n].frag
                    need = max(need, max((q for q, fr in enumerate(issued) if fr == nxt), default=-1)) if nxt else need
                    prev = slots[i - 1]
                    total = len(issued) - len(prev.ds)
                    assert need < total
                    if rep == 1: waits[i] = total - 1 - need
                    done = need
            issued += s.dsfrag
    for i, c in waits.items():
        vm = f"vmcnt({cfg.vwait}) " if (i == gs[4] and not peeled) else ""
        slots[i - 1].scalar.append(f"s_waitcnt {vm}lgkmcnt({c})")
    assert gs[4] in waits
    def reserve(i, cyc):
        for _ in range(cyc // 4): slots[i].valu.append("@none")
    ctl = {gs[4] - 3: "@shift", gs[4] - 2: f"@gate {2 * par + 1}", n - 6: "@cmp", n - 5: "@loop", n - 4: "@shift", n - 3: f"@gate {(2 * par + 2) % 4}"}
    for i, y in ctl.items():
        assert not slots[i].scalar, (i, slots[i].scalar)
        slots[i].scalar.append(y)
    reserve(gs[4] - 2, 4); reserve(n - 3, 4); reserve(n - 5, 8)
    slots[n - cfg.bw].scalar.append("s_waitcnt vmcnt(4) lgkmcnt(0)")
    slots[n - 1].scalar.append("s_barrier")
    reserve(n - 1, slots[n - 1].cap())
    if cfg.trace:
        for i in (gs[0], gs[4]): slots[i].pre = TR_PRE + ["s_memrealtime s[96:97]"]
    dmaops = set()
    for ph, (start, end) in enumerate(((gs[0], gs[4] - 3), (gs[4], n - 6))):
        lo, pend = start, []
        for m, off in enumerate(list(cfg.dma_slots if ph == 0 or not cfg.v_slots else cfg.v_slots) + [None]):
            if off is None:
                hi, runs = end - 1, pend
            else:
                pre, ld, post = dma_piece(cfg, 4 * (6 + 2 * par + ph) + m, drainable=(ph == 1 and m == 3 and bool(cfg.drain)))
                i = start + off
                assert not slots[i].ds and not slots[i].dma, (i, off)
                slots[i].dma.append(ld)
                hi, runs = i - 1, pend + pre
            flat = [x for r in runs for x in r]
            free = [x for x in range(lo, hi + 1) if not slots[x].scalar]
            if len(free) < len(flat): free = sorted(free + [hi] * (len(flat) - len(free)))
            npost = sum(len(r) for r in pend)
            tgt = free[:npost] + (free[npost - len(flat):] if len(flat) > npost else [])
            for x, q in zip(flat, tgt): slots[q].scalar.append(x)
            dmaops |= set(flat)
            if off is not None: lo, pend = i + 1, post
    at = n - 3
    slots[at].valu.append(f"v_add_u32 v{vVB}, s{sTOG}, v{vVB}" if par == 1 else "@none")
    if par == 1:
        next(sl for sl in slots[gs[2]:gs[3]] if not sl.scalar).scalar.append(f"s_sub_u32 s{sTOG}, 0, s{sTOG}")
    chain_end, chain_start = {}, {}
    for kb in range(4):
        for q, (j, s) in enumerate(qk_order(kb)):
            chain_end[(kb, j)] = gs[1 + kb] + q
            chain_start.setdefault((kb, j), gs[1 + kb] + q)
    for q in (gs[0], gs[4]):
        for i in range(q, q + cfg.head):
            while slots[i].cap() >= 4: slots[i].valu.append("@none")
    start = chain_end[(0, 0)] + 8
    ops = {p: sm_ops(p) for p in (0, 1)}
    ne = nc = 0
    late = []
    for t in range(start, start + n):
        i, wrapped = t % n, t >= n
        sl = slots[i]
        exps, cvts = ops[par if wrapped else par ^ 1]
        ne0 = ne
        if sl.cap() >= 8 and ne < 48 and t >= chain_end[exps[ne][1:]] + 5:
            sl.valu.append(exps[ne][0])
            if wrapped: late.append(("e", ne))
            ne += 1
        else:
            while sl.cap() >= 4 and nc < 24 and 2 * nc + 2 <= ne0:
                assert t < n + chain_start[cvts[nc][1:]] and t < n + gs[5] - 1
                sl.valu.append(cvts[nc][0])
                if wrapped: late.append(("c", nc))
                nc += 1
    assert ne == 48 and nc == 24, (ne, nc)
    if peeled:
        exps, cvts = ops[par ^ 1]
        done = set()
        late = list(late)
        for i, sl in enumerate(slots):
            sl.scalar = [y for y in sl.scalar if y not in dmaops and not y.startswith("@") and y != "s_barrier" and "vmcnt" not in y]
            sl.dma = []
            sl.valu = [y for y in sl.valu if y != "@none"]
            if i >= start:
                while sl.cap() >= 4:
                    c = next((c for k, c in late if k == "c" and exps[2 * c][0] in done and exps[2 * c + 1][0] in done), None)
                    if c is None: break
                    late.remove(("c", c)); sl.valu.append(cvts[c][0])
                done |= set(sl.valu)
    return slots, gs, late

def emit_slots(cfg, slots, A):
    for sl in slots:
        for x in sl.pre:
            if not (cfg.nobar and x == "s_barrier"): A(x)
        A(sl.mfma)
        for x in sl.scalar + sl.ds + ([] if cfg.nodma else sl.dma) + sl.valu:
            if x != "@none" and not (cfg.nobar and x == "s_barrier"): A(x)

def xmax(A, regs, tmp):
    for op in ("v_permlane16_swap_b32", "v_permlane32_swap_b32"):
        for r, x in zip(regs, tmp): A(f"v_mov_b32 v{x}, v{r}")
        A("s_nop 1")
        for r, x in zip(regs, tmp): A(f"{op} v{r}, v{x}")
        for r, x in zip(regs, tmp): A(f"v_max_f32 v{r}, v{r}, v{x}")

def stamp(cfg, A, n):
    if cfg.enc is not None and (n == 0 or n in cfg.enc[:2]):
        A(f"s_memtime s[{50+2*n}:{51+2*n}]" if (n and len(cfg.enc) > 2) else f"s_memrealtime s[{50+2*n}:{51+2*n}]")
    if cfg.stamps:
        A(f"s_memrealtime s[{50+2*n}:{51+2*n}]")
        if n == 2: A("s_memtime s[64:65]")
        if n == 3: A("s_memtime s[66:67]")

def ts(cfg, n):
    return [f"s_memtime s[{76+2*n}:{77+2*n}]"] if cfg.tst else []

def ps(cfg, n):
    return [f"s_memrealtime s[{76+2*n}:{77+2*n}]"] if cfg.pst else []

def gen(cfg):
    L = []
    A = L.append
    A(f"; @launch grid=(256,1,1) block=(256,1,1) lds={LDS_BYTES}")
    A('.amdgcn_target "amdgcn-amd-amdhsa--gfx950"')
    A(".text")
    A(f".globl {NAME}")
    if cfg.page: A(".p2align 12")
    A(".p2align 8")
    A(f".type {NAME},@function")
    A(f"{NAME}:")
    code0 = len(L)
    stamp(cfg, A, 0)
    A("s_cmp_ge_u32 s2, 256")
    A("s_cbranch_scc1 L_end")
    A("s_load_dwordx8 s[4:11], s[0:1], 0")
    if cfg.stamps: A("s_load_dwordx2 s[40:41], s[0:1], 40")
    t = vP(1, 0, 0)
    if cfg.warm:
        A("s_getpc_b64 s[34:35]")
        A("L_pc:")
        A(f"v_lshlrev_b32 v{t+8}, 7, v0")
        A(f"v_min_u32 v{t+8}, {'L_end' if cfg.warm is True else cfg.warm}-L_pc, v{t+8}")
        A(f"v_mov_b32 v{t+9}, s35")
        A(f"v_add_co_u32 v{t+8}, vcc, s34, v{t+8}")
    A(f"v_lshrrev_b32 v{t}, 6, v0")
    A(f"v_and_b32 v{t+1}, 63, v0")
    if cfg.warm:
        A(f"v_addc_co_u32 v{t+9}, vcc, 0, v{t+9}, vcc")
        A(f"global_load_dword v{t+10}, {V2(t+8)}, off")
    A(f"v_readfirstlane_b32 s{sW}, v{t}")
    A(f"v_and_b32 v{t+2}, 3, v0")
    A(f"v_bfe_u32 v{t+3}, v0, 2, 2")
    A(f"v_lshrrev_b32 v{t+4}, 4, v{t+1}")
    A(f"v_lshlrev_b32 v{vDMA}, 4, v{t+2}")
    A(f"v_lshl_add_u32 v{vDMA}, v{t+4}, 6, v{vDMA}")
    A(f"v_lshl_add_u32 v{vQD}, v{t+3}, 8, v{vDMA}")
    A(f"v_lshl_add_u32 v{vDMA}, v{t+3}, {12 if cfg.mix else 8}, v{vDMA}")
    A(f"v_lshl_add_u32 v{vDMA}, v{t}, {8 if cfg.mix else 10}, v{vDMA}")
    A("s_lshl_b32 s39, s2, 18")
    A("s_mul_i32 s38, s2, 49152")
    A(f"s_mul_i32 s{sWK}, s{sW}, {BS}")
    A(f"s_mul_i32 s{sPRIV}, s{sW}, {PRIVSZ}")
    A(f"s_mul_i32 s{sQ}, s{sW}, 12288")
    A(f"s_add_u32 s{sPRIV}, s{sPRIV}, {PRIV}")
    A("s_mov_b32 s14, 49152"); A("s_mov_b32 s15, 0x20000")
    A("s_mov_b32 s18, 262144"); A("s_mov_b32 s19, 0x20000")
    vb = 0x3000 if cfg.mix else 0
    A(f"s_mov_b32 s22, {262144 + vb}"); A("s_mov_b32 s23, 0x20000")
    A("s_mov_b32 s26, 49152"); A("s_mov_b32 s27, 0x20000")
    A(f"s_mov_b32 s{sK}, 0"); A(f"s_mov_b32 s{sV}, {vb}")
    A(f"s_add_u32 s{sW0V}, s{sWK}, {VRING}")
    A(f"s_add_u32 s{sWEND}, s{sWK}, {VRING + 4 * TILE}")
    A(f"s_mov_b32 s{sWV}, s{sW0V}")
    A("s_waitcnt lgkmcnt(0)")
    L.extend(ps(cfg, 0))
    A("s_add_u32 s16, s6, s39"); A("s_addc_u32 s17, s7, 0")
    A("s_add_u32 s12, s4, s38"); A("s_addc_u32 s13, s5, 0")
    npc = [0]
    def issue(n):
        for _ in range(n):
            pre, ld, post = dma_piece(cfg, npc[0]); npc[0] += 1
            for r in pre:
                for y in r: A(y)
            A("s_nop 0")
            A(ld)
            for r in post:
                for y in r: A(y)
    def gated(n):
        for _ in range(n):
            A(f"s_waitcnt vmcnt({cfg.pw - 1})"); issue(1)
    n0 = cfg.pw if cfg.pw else 4 + cfg.lead
    issue(1 if cfg.spread else n0)
    init0 = len(L)
    A("s_add_u32 s24, s10, s38"); A("s_addc_u32 s25, s11, 0")
    A("s_add_u32 s20, s8, s39"); A("s_addc_u32 s21, s9, 0")
    if vb:
        A(f"s_sub_u32 s20, s20, {vb}"); A("s_subb_u32 s21, s21, 0")
    A(f"v_accvgpr_write_b32 a{aADDR+5}, v{vQD}")
    x = vNM(0)
    A(f"v_mov_b32 v{x}, v{t+1}")
    vEW, vER, vOST, vLW, vLR = x + 1, x + 2, x + 3, x + 4, x + 5
    addr = [f"v_lshrrev_b32 v{x+6}, 4, v{x}", f"v_and_b32 v{x+7}, 15, v{x}", f"v_and_b32 v{x+8}, 1, v{x}",
            f"v_bfe_u32 v{x+9}, v{x}, 1, 1", f"v_bfe_u32 v{x+10}, v{x}, 2, 2",
            f"v_lshlrev_b32 v{vEW}, 4, v{x}", f"v_lshl_add_u32 v{vEW}, v{x+6}, 6, v{vEW}", f"v_add_u32 v{vEW}, s{sPRIV}, v{vEW}",
            f"v_mul_u32_u24 v{vER}, 320, v{x+6}", f"v_lshl_add_u32 v{vER}, v{x+8}, 7, v{vER}", f"v_lshl_add_u32 v{vER}, v{x+10}, 4, v{vER}",
            f"v_lshl_add_u32 v{vER}, v{x+9}, 3, v{vER}", f"v_add_u32 v{vER}, s{sPRIV}, v{vER}",
            f"v_lshl_add_u32 v{vLW}, v{x+7}, 2, s{sPRIV}", f"v_lshl_add_u32 v{vLR}, v{x+6}, 4, s{sPRIV}",
            f"v_and_b32 v{x+8}, 3, v{x}", f"v_bfe_u32 v{x+9}, v{x}, 2, 1", f"v_bfe_u32 v{x+10}, v{x}, 3, 1",
            f"v_lshlrev_b32 v{vOST}, 10, v{x+6}", f"v_lshl_add_u32 v{vOST}, v{x+8}, 5, v{vOST}",
            f"v_lshl_add_u32 v{vOST}, v{x+9}, 4, v{vOST}", f"v_lshl_add_u32 v{vOST}, v{x+10}, 7, v{vOST}"]
    for y in addr: A(y)
    for n in range(5): A(f"v_accvgpr_write_b32 a{aADDR+n}, v{x+1+n}")
    A(f"v_mul_u32_u24 v{vKB}, {BS}, v{t+3}")
    A(f"v_lshl_add_u32 v{vKB}, v{t+2}, 6, v{vKB}")
    A(f"v_lshl_add_u32 v{vKB}, v{t+4}, 4, v{vKB}")
    A(f"v_mul_u32_u24 v{vVB}, {BS}, v{t+4}")
    A(f"v_lshl_add_u32 v{vVB}, v{t+3}, 6, v{vVB}")
    A(f"v_lshl_add_u32 v{vVB}, v{t+2}, 3, v{vVB}")
    A(f"v_add_u32 v{vVB}, {VRING}, v{vVB}")
    A(f"v_add_u32 v{vVX}, s{sPRIV}, v{vKB}")
    A(f"s_mov_b32 s{sINC}, {1024 if cfg.mix else 4096}"); A(f"s_mov_b32 s{sINC+1}, {4 * BS}")
    A(f"s_mov_b32 s{sALT}, {262144 + vb}"); A(f"s_mov_b32 s{sALT+1}, s{sPRIV}")
    A(f"s_mov_b32 s{sDR}, {sum(1 << u for u in cfg.drain):#x}")
    A(f"s_mov_b32 s34, {C_SCALE:#x}"); A(f"s_mov_b32 s35, {C_SCALE:#x}")
    A(f"s_mov_b32 s{sTHR}, {L_MAX:#x}")
    A("s_mov_b32 s33, 0x3f803f80")
    for r in range(96): A(f"v_mov_b32 v{vO(0,0)+r}, 0")
    for r in range(4): A(f"v_accvgpr_write_b32 a{aONE+r}, s33")
    for r in range(12): A(f"v_accvgpr_write_b32 a{aL(0)+r}, 0")
    for r in range(16): A(f"v_accvgpr_write_b32 a{aF(1,0)+r}, 0")
    for r in range(12, 22, 2): A(f"v_mov_b64 {V2(t+r)}, 0")
    A("s_mov_b32 s33, 0xffff0000")
    A(f"s_mov_b32 s{sTOG}, {-2 * TILE}")
    code = sum(k << (2 * p) for p, k in enumerate(cfg.extra) if p)
    assert code < 1 << 64 and max(cfg.extra) <= 3
    A(f"s_mov_b32 s48, {code & 0xffffffff:#x}"); A(f"s_mov_b32 s49, {code >> 32:#x}")
    if cfg.spread:
        init = L[init0:]
        del L[init0:]
        cuts = [len(init) * k // (n0 - 1) for k in range(1, n0)]
        for q, y in enumerate(init):
            A(y)
            if q + 1 in cuts:
                assert not y.startswith(("s_add_u32", "s_sub_u32"))
                issue(1)
    steps = {p: build_step(cfg, p) for p in (0, 1)}
    late = steps[0][2]
    exps0, cvts0 = sm_ops(0)
    L.extend(ps(cfg, 1))
    if cfg.pst:
        A(f"s_waitcnt vmcnt({(cfg.pw or 8) - 1})"); L.extend(ps(cfg, 2))
    if cfg.pw: gated(4 + cfg.lead - cfg.pw)
    A(f"s_waitcnt vmcnt({cfg.lead})")
    L.extend(ps(cfg, 3))
    A("s_barrier")
    L.extend(ps(cfg, 4))
    issue(1 if cfg.pw else 4)
    for kb in range(4):
        if kb == 3: A("s_waitcnt lgkmcnt(6)")
        for s in range(4): A(k_read(aLAST + 16 * kb + 4 * s, vKB, kb, s))
    if cfg.pw: gated(3)
    for j in range(3):
        A(f"s_waitcnt vmcnt({cfg.lead})")
        L.extend(ps(cfg, 5 + j))
        for s in range(4):
            A(f"ds_read_b128 {V4(vQ(j,s))}, v{vVX} offset:{j * 4 * BS + s * 256}")
        issue(1 if cfg.pw else 4)
        for s in range(4):
            if cfg.pw and s == 3: issue(1)
            A(f"s_waitcnt lgkmcnt({3 - s})")
            q = vQ(j, s)
            for r in range(4):
                A(f"v_lshlrev_b32 v{t+2*r}, 16, v{q+r}")
                A(f"v_and_b32 v{t+2*r+1}, s33, v{q+r}")
            for r in range(4): A(f"v_pk_mul_f32 {V2(t+2*r)}, {V2(t+2*r)}, s[34:35]")
            for r in range(4): A(f"v_cvt_pk_bf16_f32 v{q+r}, v{t+2*r}, v{t+2*r+1}")
        if j == 2 and cfg.st1 == 0: stamp(cfg, A, 1)
        s0 = vS(0, j)
        sub = lambda kb: [f"v_sub_f32 v{vS(kb,j)+r}, v{vS(kb,j)+r}, v{t}" for r in range(4)]
        ex = lambda kb: [y for n, (y, k2, jj) in enumerate(exps0) if jj == j and k2 == kb and ("e", n) not in late]
        nm = [f"v_sub_f32 v{vNM(j)+r}, 0, v{t}" for r in range(4)]
        fill = {8: [f"v_max3_f32 v{t}, v{s0}, v{s0+1}, v{s0+2}", f"v_max_f32 v{t}, v{t}, v{s0+3}"],
                9: [f"v_mov_b32 v{t+1}, v{t}", "s_nop 0"], 10: [f"v_permlane16_swap_b32 v{t}, v{t+1}", f"v_max_f32 v{t}, v{t}, v{t+1}"],
                11: [f"v_mov_b32 v{t+1}, v{t}", "s_nop 0"], 12: [f"v_permlane32_swap_b32 v{t}, v{t+1}", f"v_max_f32 v{t}, v{t}, v{t+1}"],
                13: sub(0)[:2], 14: sub(0)[2:], 15: sub(1)}
        for kb in range(4):
            for s in range(4):
                d = vS(kb, j)
                A(f"{MF} {V4(d)}, {A4(aLAST + 16 * kb + 4 * s)}, {V4(vQ(j,s))}, {'0' if s == 0 else V4(d)}")
                if (kb, s) == (1, 1):
                    if cfg.pw: issue(1)
                    else: A("s_nop 2")
                for y in fill.get(4 * kb + s, []): A(y)
        for y in ex(0) + sub(2) + ex(1): A(y)
        if cfg.pw: issue(1)
        for y in sub(3) + ex(2) + ex(3) + nm: A(y)
        for n, (y, kb, jj) in enumerate(cvts0):
            if jj == j and ("c", n) not in late: A(y)
    assert npc[0] == 4 * 5 + cfg.lead
    for r in list(range(0, 12, 2)) + [22]: A(f"v_mov_b64 {V2(t+r)}, 0")
    if cfg.trace:
        A("s_mov_b32 s95, 0")
        A("s_memrealtime s[96:97]"); A("s_waitcnt lgkmcnt(0)")
    if cfg.oob: A("s_mov_b32 s18, 0"); A("s_mov_b32 s22, 0")
    stamp(cfg, A, 2)
    for _ in range(cfg.extra[0]):
        pre, ld, post = dma_piece(cfg, 20)
        for y in [pre[0][0], "s_nop 0", ld] + [y for r in post for y in r]: A(y)
    A("s_waitcnt vmcnt(4)")
    A("s_barrier")
    A("s_branch L_entry")
    pro = L[code0:]
    def lower(slots, par, gates=True):
        raw, out = [], []
        emit_slots(cfg, slots, raw.append)
        for y in raw:
            if y == "@shift":
                if gates: out.append("s_lshr_b64 s[48:49], s[48:49], 2")
            elif y.startswith("@gate"):
                if gates: out += [f"s_cbranch_scc1 L_gate{y.split()[1]}", f"L_back{y.split()[1]}:"]
            elif y == "@cmp":
                if par: out.append(f"s_cmp_lt_u32 s{sK}, 262144")
            elif y == "@loop":
                if par: out.append("s_cbranch_scc1 L_loop")
            else: out.append(y)
        return out
    nsl = len(steps[0][0])
    even = lower(steps[0][0], 0)
    odd_a, odd_b = lower(steps[1][0][:nsl - 4], 1), lower(steps[1][0][nsl - 4:], 1)
    stubs = []
    for loc in range(4):
        pre, ld, post = dma_piece(cfg, 20)
        stubs += [f"L_gate{loc}:", "s_and_b32 s33, s48, 3", f"s_cbranch_scc0 L_done{loc}", f"L_more{loc}:", pre[0][0], "s_sub_u32 s33, s33, 1"]
        stubs += ([] if cfg.nodma else [ld]) + [y for r in post for y in r] + ["s_cmp_lg_u32 s33, 0", f"s_cbranch_scc1 L_more{loc}", f"L_done{loc}:"]
        if loc & 1: stubs += ["s_waitcnt vmcnt(4)", "s_barrier"]
        stubs.append(f"s_branch L_back{loc}")
    A("@place")
    L.extend(stubs)
    A(".p2align 6")
    loop0 = len(L)
    A("L_loop:")
    L.extend(odd_b)
    A("L_entry:")
    L.extend(even)
    L.extend(odd_a)
    tail0 = len(L)
    A("L_last:")
    L.extend(ts(cfg, 0))
    L.extend(lower(steps[1][0][nsl - 4:], 1, gates=False))
    pstep = build_step(cfg, 0, peeled=True)
    emit_slots(cfg, pstep[0], A)
    A("L_tail:")
    if cfg.trace:
        for y in TR_PRE: A(y)
    stamp(cfg, A, 3)
    exps1, cvts1 = sm_ops(1)
    rest = [exps1[n][0] for k, n in pstep[2] if k == "e"] + [cvts1[n][0] for k, n in pstep[2] if k == "c"]
    t = vS(0, 0)
    x = vNM(0)
    rest += [f"v_accvgpr_read_b32 v{x+1+n}, a{aADDR+n}" for n in range(5)]
    rl = lambda j: t + 4 + 4 * j
    ob = vP(0, 0, 0)
    def recip_ops(check):
        o = [f"v_accvgpr_read_b32 v{t+j}, a{aL(j)}" for j in range(3)]
        if check:
            o += [f"v_add_f32 v{t+3}, v{t}, v{t+1}", f"v_add_f32 v{t+3}, v{t+3}, v{t+2}", f"v_cmp_ngt_f32 vcc, s{sTHR}, v{t+3}"]
        o += [f"v_rcp_f32 v{t+j}, v{t+j}" for j in range(3)]
        d = [f"ds_write_b32 v{vLW}, v{t+j} offset:{LOFF + 64 * j}" for j in range(3)]
        d += [f"ds_read_b128 {V4(rl(j))}, v{vLR} offset:{LOFF + 64 * j}" for j in range(3)]
        return o, d
    def scale_ops(j, packed):
        if packed:
            return [f"v_pk_mul_f32 {V2(vO(j,b)+h)}, {V2(vO(j,b)+h)}, {V2(rl(j)+h)}" for h in (0, 2) for b in range(8)]
        return [f"v_mul_f32 v{vO(j,b)+r}, v{vO(j,b)+r}, v{rl(j)+r}" for r in range(4) for b in range(8)]
    def wreg(j, r): return t + 16 + 4 * ((j * 4 + r) % 8)
    def cvt_ops(j, r):
        return [f"v_cvt_pk_bf16_f32 v{wreg(j,r)+h}, v{vO(j,2*h)+r}, v{vO(j,2*h+1)+r}" for h in range(4)]
    def oreg(j, r): return (ob + (j * 4 + r) * 4) if j < 1 else (vQ(0, 0) + (j * 4 + r) * 4)
    def lds_ops(j, r):
        o = (j * 4 + r) * ESTR
        return [f"ds_write_b128 v{vEW}, {V4(wreg(j,r))} offset:{o}",
                f"ds_read_b64_tr_b16 {V2(oreg(j,r))}, v{vER} offset:{o}",
                f"ds_read_b64_tr_b16 {V2(oreg(j,r)+2)}, v{vER} offset:{o + 64}"]
    def store_op(j, r):
        off = f" offset:{r * 256}" if r else ""
        return f"buffer_store_dwordx4 {V4(oreg(j,r))}, v{vOST}, {SRD_O}, s{sQ+j} offen{off} {cfg.stflags}".rstrip()
    def last_order(j):
        bs = range(8) if j % 2 == 0 else range(7, -1, -1)
        out = []
        for n, b in enumerate(bs):
            out += [(b, k) for k in ([0, 1] if n % 2 == 0 else [1, 0])]
        return out
    def aV(b, k): return aLAST + 8 * b + 4 * k
    def last_slots(j):
        return [Slot(f"{MF} {V4(vO(j,b))}, {V4(vP(1,j,k))}, {A4(aV(b,k))}, {V4(vO(j,b))}", ("L", b, k)) for b, k in last_order(j)]
    head = pv_group(3, 1, 0) + sum_group(1) + last_slots(0)
    head[0].pre = ts(cfg, 1) + ["s_waitcnt lgkmcnt(4)"]
    head[18].pre = ts(cfg, 3)
    head[0].scalar.append(f"s_mul_i32 s{sQ}, s{sW}, 12288")
    head[1].scalar.append(f"s_add_u32 s{sQ+1}, s{sQ}, 4096")
    head[2].scalar.append(f"s_add_u32 s{sQ+2}, s{sQ}, 8192")
    q = 0
    while rest:
        c = 8 if "v_exp" in rest[0] else 4
        if head[q].cap() >= c: head[q].valu.append(rest.pop(0))
        else: q += 1
    assert q < 10
    head[5].scalar.append("s_waitcnt lgkmcnt(0)")
    rdpos = list(range(max(q + 1, 6), max(q + 1, 6) + 16))
    for pos, (b, k) in zip(rdpos, last_order(0)):
        head[pos].ds += v_read(aV(b, k), vVB, b, k, TILE)
    head[rdpos[0]].pre = ["s_waitcnt vmcnt(0)", "s_barrier"] + ts(cfg, 2)
    if cfg.st1 == 1: stamp(cfg, head[rdpos[0]].pre.append, 1)
    for pos in range(rdpos[0], 33):
        issued = sum(1 for p2 in rdpos if p2 < pos)
        n = pos - 17
        assert issued > n
        allow = 2 * issued if n < 0 else 2 * (issued - n - 1)
        if n >= 0 or allow > 12: head[pos].scalar.append(f"s_waitcnt lgkmcnt({min(allow, 12)})")
    rv, rdd = recip_ops(True)
    q = max(rdpos[-1] + 1, 22)
    while rv:
        c = 8 if "v_rcp" in rv[0] else 4
        if 8 - sum(8 if "v_rcp" in y else 4 for y in head[q].valu) >= c: head[q].valu.append(rv.pop(0))
        else: q += 1
    assert q <= 32, q
    emit_slots(cfg, head[:q + 1], A)
    hrest = head[q + 1:]
    for sl in hrest:
        sl.scalar = [("s_waitcnt lgkmcnt(0)" if y.startswith("s_waitcnt") else y) for y in sl.scalar]
    body = hrest + last_slots(1) + last_slots(2)
    nh = len(hrest)
    body[0].scalar = ["s_waitcnt lgkmcnt(0)"]
    for sl in body[1:nh]: sl.scalar = []
    body[0].ds += rdd[0:3]; body[1].ds += rdd[3:6]
    first = max(nh + 1, 6)
    body[2].scalar.append("s_branch L_slow" if cfg.force_slow else "s_cbranch_vccnz L_slow")
    body[first].scalar.append("s_waitcnt lgkmcnt(0)")
    rows = [(j, r) for j in range(3) for r in range(4)]
    span = (len(body) - first) / 8.0
    for n in range(8):
        j, r = rows[n]
        a0, a1 = first + int(round(n * span)), first + int(round((n + 1) * span))
        if j == 1: a0 = max(a0, nh + 17)
        v = scale_ops(j, False)[8 * r:8 * r + 8]
        if j == 1: v.reverse()
        v += cvt_ops(j, r)
        for k, y in enumerate(v): body[a0 + k * (a1 - a0) // 12].valu.append(y)
        if n >= 1: body[a0].ds += lds_ops(*rows[n - 1])
        if n >= 2:
            body[a0 + 1].scalar.append("s_waitcnt lgkmcnt(3)")
            body[a0 + 1].ds.append(store_op(*rows[n - 2]))
    body[first + 1].pre = ts(cfg, 4)
    body[nh + 16].pre = ts(cfg, 5)
    mark = len(L)
    emit_slots(cfg, body, A)
    slow_at = next(n for n in range(mark, len(L)) if "L_slow" in L[n]) + 1
    if cfg.st1 == 2: stamp(cfg, A, 1)
    L.extend(ts(cfg, 6))
    for y in lds_ops(1, 3): A(y)
    A("s_waitcnt lgkmcnt(3)"); A(store_op(1, 2))
    sc = scale_ops(2, True)
    for y in sc[0:8] + cvt_ops(2, 0): A(y)
    A("s_waitcnt lgkmcnt(0)"); A(store_op(1, 3))
    for y in lds_ops(2, 0) + cvt_ops(2, 1): A(y)
    for y in lds_ops(2, 1) + sc[8:16] + cvt_ops(2, 2): A(y)
    A("s_waitcnt lgkmcnt(3)"); A(store_op(2, 0))
    for y in lds_ops(2, 2) + cvt_ops(2, 3): A(y)
    A("s_waitcnt lgkmcnt(3)"); A(store_op(2, 1))
    for y in lds_ops(2, 3): A(y)
    A("s_waitcnt lgkmcnt(3)"); A(store_op(2, 2))
    A("s_waitcnt lgkmcnt(0)"); A(store_op(2, 3))
    L.extend(ts(cfg, 7))
    if cfg.align:
        L[loop0:], left = align_stream(L[loop0:])
    k = L.index("@place")
    if cfg.page:
        loop_bytes = sum(size_of(y) for y in L[loop0:L.index("L_last:")])
        stub_bytes = -(-sum(size_of(y) for y in stubs) // 64) * 64
        gap = (4096 - (loop_bytes - 128) - stub_bytes) // 64 * 64
        L[k] = ".p2align 12" + (f"\n.fill {gap // 4}, 4, 0xbf800000" if gap > 0 else "")
    else:
        L[k] = ".p2align 2"
    A("L_fin:")
    if cfg.stamps:
        stamp(cfg, A, 4)
        A("s_waitcnt vmcnt(0)")
        stamp(cfg, A, 5)
        A("s_mov_b32 s42, 0x100000"); A("s_mov_b32 s43, 0x20000")
        A("s_getreg_b32 s62, hwreg(HW_REG_XCC_ID)")
        A("s_getreg_b32 s63, hwreg(HW_REG_HW_ID)")
        A("s_and_b32 s62, s62, 15"); A("s_and_b32 s63, s63, 0xff00"); A("s_or_b32 s62, s62, s63")
        A("s_waitcnt lgkmcnt(0)")
        for n in range(6): A(f"v_mov_b32 v{12+n}, s{50+2*n}")
        A("s_sub_u32 s66, s66, s64"); A("v_mov_b32 v18, s62"); A("v_mov_b32 v19, s66")
        A(f"s_lshl_b32 s37, s2, 2"); A(f"s_add_u32 s37, s37, s{sW}"); A("s_lshl_b32 s37, s37, 5")
        A("v_mov_b32 v10, s37")
        A(f"buffer_store_dwordx4 v[12:15], v10, {SRD_WS}, 0 offen")
        A(f"buffer_store_dwordx4 v[16:19], v10, {SRD_WS}, 0 offen offset:16")
        if cfg.trace:
            A("v_mbcnt_lo_u32_b32 v21, -1, 0"); A("v_mbcnt_hi_u32_b32 v21, -1, v21"); A("v_lshlrev_b32 v21, 2, v21")
            A("s_lshl_b32 s37, s37, 3"); A("s_add_u32 s37, s37, 0x20000")
            A(f"buffer_store_dword v3, v21, {SRD_WS}, s37 offen")
        if cfg.tst or cfg.pst:
            for n in range(8): A(f"v_mov_b32 v{20+n}, s{76+2*n}")
            A("s_mov_b32 s37, 0x10000")
            A(f"buffer_store_dwordx4 v[20:23], v10, {SRD_WS}, s37 offen")
            A(f"buffer_store_dwordx4 v[24:27], v10, {SRD_WS}, s37 offen offset:16")
    if cfg.enc is not None:
        stamp(cfg, A, 4)
        A("s_waitcnt vmcnt(0)")
        stamp(cfg, A, 5)
        A("s_waitcnt lgkmcnt(0)")
        if cfg.encwg is not None:
            A(f"s_cmp_lg_u32 s2, {cfg.encwg}")
            A("s_cbranch_scc1 L_end")
        A(f"s_sub_u32 s38, s{50+2*cfg.enc[1]}, s{50+2*cfg.enc[0]}")
        A("s_mul_i32 s38, s38, 10" if len(cfg.enc) == 2 else "s_lshr_b32 s38, s38, 1")
        A("s_add_u32 s38, s38, 10000")
        A("L_spin:")
        A("s_sleep 4")
        A("s_memrealtime s[72:73]")
        A("s_waitcnt lgkmcnt(0)")
        A("s_sub_u32 s72, s72, s50")
        A("s_cmp_lt_u32 s72, s38")
        A("s_cbranch_scc1 L_spin")
    A("L_end:")
    A("s_endpgm")
    tail = L[tail0:]
    slow0 = len(L)
    A("L_slow:")
    A("s_waitcnt vmcnt(0) lgkmcnt(0)")
    A("s_nop 7")
    vM, vAL, vAT, vMX = vP(1, 0, 0), vP(1, 0, 0) + 4, vP(1, 0, 0) + 8, vS(2, 0)
    HALF = 8 * BS
    A(f"v_accvgpr_read_b32 v{vDMA}, a{aADDR+5}")
    A(f"v_add_u32 v{vKB}, s{sPRIV}, v{vKB}")
    A(f"s_sub_u32 s38, s{sPRIV}, {VRING + 2 * TILE}")
    A(f"v_add_u32 v{vVB}, s38, v{vVB}")
    for r in range(0, 96, 2): A(f"v_mov_b64 {V2(vO(0,0)+r)}, 0")
    for r in range(12): A(f"v_accvgpr_write_b32 a{aL(0)+r}, 0")
    for j in range(3): A(f"v_mov_b32 v{vM+j}, 0xff7fffff")
    A(f"s_mov_b32 s{sK}, 0")
    slowl0 = len(L)
    A("L_slow_loop:")
    for srd in (SRD_K, SRD_V):
        for a in range(8):
            A(f"s_add_u32 m0, s{sPRIV}, {a * BS}")
            A(f"s_add_u32 s38, s{sK}, {a * 1024 + (vb if srd == SRD_V else 0)}")
            A(f"buffer_load_dwordx4 v{vDMA}, {srd}, s38 offen lds")
        A("s_waitcnt vmcnt(0)")
        if srd == SRD_K:
            for kb in range(2):
                for s in range(4): A(k_read(16 * kb + 4 * s, vKB, kb, s))
            A("s_waitcnt lgkmcnt(0)")
    for b in range(8):
        for y in v_read(32 + 4 * b, vVB, b, 0): A(y)
        if b == 3: A("s_waitcnt lgkmcnt(0)")
    for kb in range(2):
        for j in range(3):
            for s in range(4):
                d = vS(kb, j)
                A(f"{MF} {V4(d)}, {A4(16 * kb + 4 * s)}, {V4(vQ(j,s))}, {'0' if s == 0 else V4(d)}")
    A("s_nop 7")
    for j in range(3):
        s0, s1 = vS(0, j), vS(1, j)
        A(f"v_max3_f32 v{vMX+j}, v{s0}, v{s0+1}, v{s0+2}")
        A(f"v_max3_f32 v{vMX+j}, v{vMX+j}, v{s0+3}, v{s1}")
        A(f"v_max3_f32 v{vMX+j}, v{vMX+j}, v{s1+1}, v{s1+2}")
        A(f"v_max3_f32 v{vMX+j}, v{vMX+j}, v{s1+3}, v{vM+j}")
    xmax(A, [vMX + j for j in range(3)], [vMX + 4 + j for j in range(3)])
    for j in range(3): A(f"v_sub_f32 v{vAL+j}, v{vM+j}, v{vMX+j}")
    for j in range(3): A(f"v_exp_f32 v{vAL+j}, v{vAL+j}")
    for j in range(3): A(f"v_mov_b32 v{vM+j}, v{vMX+j}")
    A("s_waitcnt lgkmcnt(0)")
    for j in range(3): A(f"ds_write_b32 v{vLW}, v{vAL+j} offset:{LOFF + 64 * j}")
    A("s_waitcnt lgkmcnt(0)")
    for j in range(3): A(f"ds_read_b128 {V4(vAT + 4 * j)}, v{vLR} offset:{LOFF + 64 * j}")
    for j in range(3):
        for r in range(4):
            A(f"v_accvgpr_read_b32 v{vMX+8}, a{aL(j)+r}")
            A(f"v_mul_f32 v{vMX+8}, v{vMX+8}, v{vAL+j}")
            A(f"v_accvgpr_write_b32 a{aL(j)+r}, v{vMX+8}")
    for kb in range(2):
        for j in range(3):
            for r in range(4): A(f"v_sub_f32 v{vS(kb,j)+r}, v{vS(kb,j)+r}, v{vM+j}")
    for y, kb, j in exps0:
        if kb < 2: A(y)
    A("s_waitcnt lgkmcnt(0)")
    for y, kb, j in cvts0:
        if kb < 2: A(y)
    for j in range(3):
        for b in range(8):
            for r in range(4): A(f"v_mul_f32 v{vO(j,b)+r}, v{vO(j,b)+r}, v{vAT+4*j+r}")
    A("s_nop 1")
    for j in range(3): A(f"{MF} {A4(aL(j))}, {A4(aONE)}, {V4(vP(0,j,0))}, {A4(aL(j))}")
    for b in range(8):
        for j in range(3):
            A(f"{MF} {V4(vO(j,b))}, {V4(vP(0,j,0))}, {A4(32 + 4 * b)}, {V4(vO(j,b))}")
    A(f"s_add_u32 s{sK}, s{sK}, 8192")
    A(f"s_cmp_lt_u32 s{sK}, 262144")
    A("s_cbranch_scc1 L_slow_loop")
    slowl1 = len(L)
    A("s_nop 7")
    rv, rdd = recip_ops(False)
    for y in rv + ["s_nop 0"] + rdd + ["s_waitcnt lgkmcnt(0)"]: A(y)
    A(f"s_add_u32 s{sQ+1}, s{sQ}, 4096"); A(f"s_add_u32 s{sQ+2}, s{sQ}, 8192")
    for j in range(3):
        for y in scale_ops(j, True): A(y)
        for r in range(4):
            for y in cvt_ops(j, r) + lds_ops(j, r): A(y)
        A("s_waitcnt lgkmcnt(0)")
        for r in range(4): A(store_op(j, r))
    A("s_branch L_fin")
    errs = check_hazards(pro + even + odd_a + odd_b + even + odd_a + tail, "fast")
    errs += check_hazards(L[tail0:slow_at] + L[slow0:slowl1] + L[slowl0:], "slow")
    errs += check_lgkm(pro + even + odd_a + odd_b + even + odd_a + tail, "fast")
    errs += check_lgkm(L[tail0:slow_at] + L[slow0:slowl1] + L[slowl0:], "slow")
    if errs:
        raise RuntimeError("\n".join(errs))
    A('.section .rodata,"a"')
    A(".p2align 6")
    A(f".amdhsa_kernel {NAME}")
    A(f"  .amdhsa_next_free_vgpr {256 + NAGPR}")
    A("  .amdhsa_next_free_sgpr 102")
    A("  .amdhsa_accum_offset 256")
    A("  .amdhsa_group_segment_fixed_size 0")
    A("  .amdhsa_kernarg_size 48")
    A("  .amdhsa_user_sgpr_count 2")
    A("  .amdhsa_user_sgpr_kernarg_segment_ptr 1")
    A("  .amdhsa_system_sgpr_workgroup_id_x 1")
    A("  .amdhsa_float_denorm_mode_32 3")
    A(".end_amdhsa_kernel")
    out = []
    for l in L:
        out.append(l if (l.endswith(":") or l.startswith((".", ";", " "))) else "    " + l)
    return "\n".join(out) + "\n"

if __name__ == "__main__":
    kw = {}
    for a in sys.argv[1:]:
        k, v = a.split("=", 1)
        try: v = eval(v)
        except Exception: pass
        kw[k] = v
    sys.stdout.write(gen(Cfg(**kw)))
```
